```python
import torch

def _softmax(x, axis=-1):
    return torch.softmax(x, dim=axis)

def _gelu(x):
    return torch.nn.functional.gelu(x, approximate='tanh')

def _silu(x):
    return torch.nn.functional.silu(x)

def _sigmoid(x):
    return torch.sigmoid(x)

def _layernorm(x, axis=-1, eps=1e-05):
    m = x.mean(dim=axis, keepdim=True)
    v = x.var(dim=axis, keepdim=True, unbiased=False)
    return (x - m) / torch.sqrt(v + eps)

def _scatter_add(tgt, idx, src, axis=0):
    return tgt.clone().index_add_(axis, idx, src)

def _segment_sum(src, seg, n):
    out = torch.zeros((n,) + src.shape[1:], dtype=src.dtype)
    return out.index_add_(0, seg, src)

def _pad(x, pw):
    flat = tuple((v for pair in reversed(pw) for v in pair))
    return torch.nn.functional.pad(x, flat)
kernel_name = 'sequential_preLN__memory_aug_recurrent_mem_tr__glu_gated_bilinear__prompt'

def setup_inputs():

    _w = lambda a: (lambda t: t.to(torch.bfloat16) if t.is_floating_point() else t)(torch.as_tensor(a))

    def _A_setup():
        B, S, Dm = (1, 2048, 640)
        H, Dh = (32, 192)
        M, seg = (8, 32)
        seg = min(seg, S)
        S = S // seg * seg
        return {'x': _w((lambda *s: torch.randn(*s, dtype=torch.bfloat16) * 0.05)(B, S, Dm)), 'mem0': _w((lambda *s: torch.randn(*s, dtype=torch.bfloat16) * 0.2)(B, M, Dm)), 'Wq': _w((lambda *s: torch.randn(*s, dtype=torch.bfloat16) * 1.6)(Dm, H, Dh) * Dm ** (-0.5)), 'Wk': _w((lambda *s: torch.randn(*s, dtype=torch.bfloat16) * 1.6)(Dm, H, Dh) * Dm ** (-0.5)), 'Wv': _w((lambda *s: torch.randn(*s, dtype=torch.bfloat16) * 0.2)(Dm, H, Dh) * Dm ** (-0.5)), 'Wo': _w((lambda *s: torch.randn(*s, dtype=torch.bfloat16) * 0.2)(H, Dh, Dm) * (H * Dh) ** (-0.5)), 'seg_len': seg}
    _A_in = _A_setup()

    def _B_setup():
        B, S, D, F = (1, 2048, 640, 1536)
        return {'x': _w((lambda *s: torch.randn(*s, dtype=torch.bfloat16) * 0.05)(B, S, D)), 'w_gate': _w((lambda *s: torch.randn(*s, dtype=torch.bfloat16) * 0.2)(D, F) * D ** (-0.5)), 'w_up': _w((lambda *s: torch.randn(*s, dtype=torch.bfloat16) * 0.2)(D, F) * D ** (-0.5)), 'w_down': _w((lambda *s: torch.randn(*s, dtype=torch.bfloat16) * 0.2)(F, D) * F ** (-0.5))}
    _B_in = _B_setup()
    return {'A_x': _A_in['x'], 'A_mem0': _A_in['mem0'], 'A_Wq': _A_in['Wq'], 'A_Wk': _A_in['Wk'], 'A_Wv': _A_in['Wv'], 'A_Wo': _A_in['Wo'], 'A_seg_len': _A_in['seg_len'], 'B_x': _B_in['x'], 'B_w_gate': _B_in['w_gate'], 'B_w_up': _B_in['w_up'], 'B_w_down': _B_in['w_down']}

def reference(A_x, A_mem0, A_Wq, A_Wk, A_Wv, A_Wo, A_seg_len, B_x, B_w_gate, B_w_up, B_w_down):

    def _A_ref(x, mem0, Wq, Wk, Wv, Wo, seg_len):
        B, S, Dm = x.shape
        H, Dh = (Wq.shape[1], Wq.shape[2])
        M = mem0.shape[1]
        scale = Dh ** (-0.5)
        n_seg = S // seg_len
        L = M + seg_len
        idx = torch.arange(L)
        mask = (idx[:, None] < M) | (idx[:, None] >= idx[None, :])
        mem = mem0
        outs = []
        for s in range(n_seg):
            xs = x[:, s * seg_len:(s + 1) * seg_len, :].clone()
            h = torch.concatenate([mem, xs], axis=1)
            q = torch.einsum('btd,dhe->bhte', h, Wq)
            k = torch.einsum('btd,dhe->bhte', h, Wk)
            v = torch.einsum('btd,dhe->bhte', h, Wv)
            scores = torch.einsum('bhqe,bhke->bhqk', q, k) * scale
            scores = torch.where(mask[None, None], scores, -1000000000.0)
            p = _softmax(scores, axis=-1)
            o = torch.einsum('bhqk,bhke->bhqe', p, v)
            o = torch.einsum('bhte,hed->btd', o, Wo)
            mem = o[:, :M, :].clone()
            outs.append(o[:, M:, :])
        return torch.concatenate(outs, axis=1)

    def _B_ref(x, w_gate, w_up, w_down):
        g = torch.einsum('bsd,df->bsf', x, w_gate)
        u = torch.einsum('bsd,df->bsf', x, w_up)
        h = g * u
        return torch.einsum('bsf,fd->bsd', h, w_down)
    x = A_x
    h = x + _A_ref(_layernorm(x, axis=-1), A_mem0, A_Wq, A_Wk, A_Wv, A_Wo, A_seg_len)
    h2 = h + _B_ref(_layernorm(h, axis=-1), B_w_gate, B_w_up, B_w_down)
    return h2
```

```python
class Asm:
    def __init__(self):
        self.lines = []
        self.uid = 0
    def __call__(self, s):
        for l in s.strip('\n').split('\n'):
            self.lines.append('    ' + l.strip() if not l.strip().endswith(':') else l.strip())
    def label(self, name):
        self.lines.append(name + ':')
    def newlabel(self, base):
        self.uid += 1
        return f"L_{base}_{self.uid}"
    def raw(self, s):
        self.lines.append(s)
    def text(self):
        return '\n'.join(self.lines) + '\n'

def vr(a, n=1):
    return f"v{a}" if n == 1 else f"v[{a}:{a+n-1}]"
def sr(a, n=1):
    return f"s{a}" if n == 1 else f"s[{a}:{a+n-1}]"
def ar(a, n=1):
    return f"a{a}" if n == 1 else f"a[{a}:{a+n-1}]"
```

```python
from asmlib import Asm, vr, sr, ar
from gen import *

SCALE_HEX = 0x3d93cd3a
LOG2E_HEX = 0x3fb8aa3b
NEGBIG = 0xce6e6b28

def softmax_T(a, S, ntile_list, tmp, sc_sgpr, l2e_sgpr):
    pass

def round_scale(a, regs, tmp, ssc):
    for i in range(0, len(regs), 2):
        x, y = regs[i], regs[i+1]
        a(f"v_cvt_pk_bf16_f32 v{tmp}, v{x}, v{y}")
        a("s_nop 0")
        a(f"v_lshlrev_b32 v{x}, 16, v{tmp}")
        a(f"v_and_b32 v{y}, 0xffff0000, v{tmp}")
        a(f"v_mul_f32 v{x}, s{ssc}, v{x}")
        a(f"v_mul_f32 v{y}, s{ssc}, v{y}")
        a(f"v_cvt_pk_bf16_f32 v{tmp}, v{x}, v{y}")
        a("s_nop 0")
        a(f"v_lshlrev_b32 v{x}, 16, v{tmp}")
        a(f"v_and_b32 v{y}, 0xffff0000, v{tmp}")

def xlane_reduce(a, v, t, op):
    a(f"v_mov_b32 v{t}, v{v}")
    a("s_nop 1")
    a(f"v_permlane32_swap_b32 v{v}, v{t}")
    a("s_nop 1")
    a(f"{op} v{v}, v{v}, v{t}")
    a(f"v_mov_b32 v{t}, v{v}")
    a("s_nop 1")
    a(f"v_permlane16_swap_b32 v{v}, v{t}")
    a("s_nop 1")
    a(f"{op} v{v}, v{v}, v{t}")

def softmax_rows(a, regs, vmax, vsum, t, sl2e):
    a(f"v_max3_f32 v{vmax}, v{regs[0]}, v{regs[1]}, v{regs[2]}")
    for i in range(3, len(regs)-1, 2):
        a(f"v_max3_f32 v{vmax}, v{vmax}, v{regs[i]}, v{regs[i+1]}")
    a(f"v_max_f32 v{vmax}, v{vmax}, v{regs[-1]}")
    xlane_reduce(a, vmax, t, "v_max_f32")
    for r in regs:
        a(f"v_sub_f32 v{r}, v{r}, v{vmax}")
        a(f"v_mul_f32 v{r}, s{sl2e}, v{r}")
    for r in regs:
        a(f"v_exp_f32 v{r}, v{r}")
    a("s_nop 0")
    a(f"v_add_f32 v{vsum}, v{regs[0]}, v{regs[1]}")
    for r in regs[2:]:
        a(f"v_add_f32 v{vsum}, v{vsum}, v{r}")
    xlane_reduce(a, vsum, t, "v_add_f32")
    a(f"v_rcp_f32 v{vsum}, v{vsum}")
    a("s_nop 0")
    for r in regs:
        a(f"v_mul_f32 v{r}, v{r}, v{vsum}")

VRS = 416

def gen_xattn(a, name):
    kernel_begin(a, name)
    done = a.newlabel("done")
    a("s_cmp_ge_u32 s2, 512")
    a(f"s_cbranch_scc1 {done}")
    a(f"s_load_dwordx2 s[6:7], s[0:1], {KA['ws']}")
    a("v_and_b32 v1, 63, v0")
    a("v_lshrrev_b32 v2, 6, v0")
    a("s_nop 0")
    a("v_readfirstlane_b32 s40, v2")
    a("s_nop 3")
    a("s_lshl_b32 s41, s2, 2")
    a("s_add_u32 s41, s41, s40")
    a("s_lshr_b32 s42, s41, 5")
    a("s_and_b32 s43, s41, 31")
    a(f"s_mov_b32 s50, {SCALE_HEX}")
    a(f"s_mov_b32 s51, {LOG2E_HEX}")
    a("s_waitcnt lgkmcnt(0)")
    srd(a, 8, 6, WS_BYTES)
    a(f"s_mul_i32 s44, s42, {32*12288}")
    a("s_mul_i32 s45, s43, 384")
    a("s_add_u32 s44, s44, s45")
    a(f"s_mul_i32 s46, s42, {8*12288}")
    a("s_add_u32 s46, s46, s45")
    for nm, reg, base in (("q", 52, QX), ("k", 53, KX), ("v", 54, VX)):
        a(f"s_add_u32 s{reg}, s44, {base}")
    a(f"s_add_u32 s55, s46, {KM}")
    a(f"s_add_u32 s56, s46, {VM}")
    a(f"s_mul_i32 s57, s40, {48*VRS}")
    a("v_mov_b32 v4, 0xaaaaaab")
    for i in range(15):
        a(f"v_add_u32 v3, {i*64}, v1")
        a("v_mul_hi_u32 v5, v3, v4")
        a("v_mul_u32_u24 v6, 24, v5")
        a("v_sub_u32 v6, v3, v6")
        a(f"v_mul_u32_u24 v{236+0}, {VRS}, v5")
        a(f"v_lshl_add_u32 v{236+0}, v6, 4, v{236+0}")
        a(f"v_add_u32 v{240+i}, s57, v236")
        if i < 12:
            a("v_mul_u32_u24 v7, 12288, v5")
            a("v_lshl_add_u32 v7, v6, 4, v7")
            a(f"buffer_load_dwordx4 v[{176+4*i}:{179+4*i}], v7, s[8:11], s54 offen")
        else:
            a("v_subrev_u32 v5, 32, v5")
            a("v_mul_u32_u24 v7, 12288, v5")
            a("v_lshl_add_u32 v7, v6, 4, v7")
            a(f"buffer_load_dwordx4 v[{176+4*i}:{179+4*i}], v7, s[8:11], s56 offen")
    a("v_and_b32 v8, 15, v1")
    a("v_lshrrev_b32 v9, 4, v1")
    a("v_mul_u32_u24 v10, 12288, v8")
    a("v_lshl_add_u32 v10, v9, 4, v10")
    a("v_and_b32 v11, 7, v8")
    a("v_mul_u32_u24 v11, 12288, v11")
    a("v_lshl_add_u32 v11, v9, 4, v11")
    QF, KF = 16, 64
    for qt in range(2):
        a(f"s_add_u32 s58, s52, {qt*16*12288}")
        for ks in range(6):
            r = QF + (qt*6+ks)*4
            a(f"buffer_load_dwordx4 v[{r}:{r+3}], v10, s[8:11], s58 offen offset:{ks*64}")
    for kt in range(3):
        if kt < 2:
            a(f"s_add_u32 s58, s53, {kt*16*12288}")
        for ks in range(6):
            r = KF + (kt*6+ks)*4
            if kt < 2:
                a(f"buffer_load_dwordx4 v[{r}:{r+3}], v10, s[8:11], s58 offen offset:{ks*64}")
            else:
                a(f"buffer_load_dwordx4 v[{r}:{r+3}], v11, s[8:11], s55 offen offset:{ks*64}")
    a("v_mov_b32 v160, 0"); a("v_mov_b32 v161, 0"); a("v_mov_b32 v162, 0"); a("v_mov_b32 v163, 0")
    a("v_lshlrev_b32 v3, 4, v1")
    a("v_add_u32 v3, s57, v3")
    for i in range(3):
        a(f"ds_write_b128 v3, v[160:163] offset:{40*VRS + i*1024}")
    a("v_cmp_gt_u32 vcc, 16, v1")
    a("s_and_saveexec_b64 s[60:61], vcc")
    a(f"ds_write_b128 v3, v[160:163] offset:{40*VRS + 3*1024}")
    a("s_mov_b64 exec, s[60:61]")
    a("s_waitcnt vmcnt(30)")
    for i in range(15):
        a(f"ds_write_b128 v{240+i}, v[{176+4*i}:{179+4*i}]")
    SA = 136
    for i in range(24):
        a(f"v_mov_b32 v{SA+i}, 0")
    a("s_waitcnt vmcnt(0)")
    for ks in range(6):
        for kt in range(3):
            for qt in range(2):
                acc = SA + (kt*2+qt)*4
                kf = KF + (kt*6+ks)*4
                qf = QF + (qt*6+ks)*4
                a(f"v_mfma_f32_16x16x32_bf16 v[{acc}:{acc+3}], v[{kf}:{kf+3}], v[{qf}:{qf+3}], v[{acc}:{acc+3}]")
    a("s_nop 7")
    a("s_nop 1")
    PF = 160
    a(f"v_mov_b32 v12, {NEGBIG}")
    a("v_lshlrev_b32 v13, 2, v9")
    for qt in range(2):
        regs = [SA + (kt*2+qt)*4 + r for kt in range(3) for r in range(4)]
        round_scale(a, regs, 14, 50)
        for kt in range(2):
            for r in range(4):
                c = 16*kt + r - 16*qt
                reg = SA + (kt*2+qt)*4 + r
                if c + 12 <= 0:
                    continue
                a(f"v_add_u32 v14, {c & 0xffffffff}, v13")
                a("v_cmp_le_i32 vcc, v14, v8")
                a("s_nop 1")
                a(f"v_cndmask_b32 v{reg}, v12, v{reg}, vcc")
        a("v_cmp_gt_u32 vcc, 2, v9")
        a("s_nop 1")
        for r in range(4):
            reg = SA + (2*2+qt)*4 + r
            a(f"v_cndmask_b32 v{reg}, v12, v{reg}, vcc")
        softmax_rows(a, regs, 14, 15, 3, 51)
        p0 = PF + qt*8
        a(f"v_cvt_pk_bf16_f32 v{p0}, v{regs[0]}, v{regs[1]}")
        a(f"v_cvt_pk_bf16_f32 v{p0+1}, v{regs[2]}, v{regs[3]}")
        a(f"v_cvt_pk_bf16_f32 v{p0+2}, v{regs[4]}, v{regs[5]}")
        a(f"v_cvt_pk_bf16_f32 v{p0+3}, v{regs[6]}, v{regs[7]}")
        a(f"v_cvt_pk_bf16_f32 v{p0+4}, v{regs[8]}, v{regs[9]}")
        a(f"v_cvt_pk_bf16_f32 v{p0+5}, v{regs[10]}, v{regs[11]}")
        a(f"v_mov_b32 v{p0+6}, 0")
        a(f"v_mov_b32 v{p0+7}, 0")
    OA = 16
    for i in range(96):
        a(f"v_mov_b32 v{OA+i}, 0")
    a("v_lshrrev_b32 v3, 2, v8")
    a("v_add_u32 v3, v13, v3")
    a(f"v_mul_u32_u24 v3, {VRS}, v3")
    a("v_and_b32 v4, 3, v1")
    a("v_lshl_add_u32 v3, v4, 3, v3")
    a("v_add_u32 v3, s57, v3")
    a("s_waitcnt lgkmcnt(0)")
    VF = 112
    for b in (VF, VF+8):
        a(f"v_mov_b32 v{b+6}, 0")
        a(f"v_mov_b32 v{b+7}, 0")
    for dt in range(12):
        b = VF + (dt % 2)*8
        a(f"ds_read_b64_tr_b16 v[{b}:{b+1}], v3 offset:{0*16*VRS + dt*32}")
        a(f"ds_read_b64_tr_b16 v[{b+2}:{b+3}], v3 offset:{1*16*VRS + dt*32}")
        a(f"ds_read_b64_tr_b16 v[{b+4}:{b+5}], v3 offset:{2*16*VRS + dt*32}")
        a("s_waitcnt lgkmcnt(0)")
        for qt in range(2):
            acc = OA + (dt*2+qt)*4
            p0 = PF + qt*8
            a(f"v_mfma_f32_16x16x32_bf16 v[{acc}:{acc+3}], v[{b}:{b+3}], v[{p0}:{p0+3}], v[{acc}:{acc+3}]")
            a(f"v_mfma_f32_16x16x32_bf16 v[{acc}:{acc+3}], v[{b+4}:{b+7}], v[{p0+4}:{p0+7}], v[{acc}:{acc+3}]")
    a("s_nop 7")
    a("s_nop 1")
    a("v_mul_u32_u24 v10, 12288, v8")
    a("v_lshl_add_u32 v10, v9, 3, v10")
    a(f"s_add_u32 s58, s44, {OO}")
    a(f"s_add_u32 s59, s58, {16*12288}")
    for dt in range(12):
        for qt in range(2):
            acc = OA + (dt*2+qt)*4
            t = 128 + ((dt*2+qt) % 4)*2
            a(f"v_cvt_pk_bf16_f32 v{t}, v{acc}, v{acc+1}")
            a(f"v_cvt_pk_bf16_f32 v{t+1}, v{acc+2}, v{acc+3}")
            a("s_nop 0")
            a(f"buffer_store_dwordx2 v[{t}:{t+1}], v10, s[8:11], s{58+qt} offen offset:{dt*32}")
    a.label(done)
    a("s_endpgm")
    kernel_end(a, name, 256, 64)
    return 512, 4*48*VRS
```

```python
from asmlib import Asm, vr, sr, ar
from gen import *
from gen_attn import round_scale, softmax_rows, SCALE_HEX, LOG2E_HEX, NEGBIG, VRS

L_MEM = 0
MRS = 1296
L_PART = 10496
L_Q = 20736
L_K = 23936
L_V = 27136
L_O = 67072
L_END = 70272
QRS = 400
VBUF = 48 * VRS
POLL_CAP = 1 << 22

def gen_chain(a, name):
    kernel_begin(a, name)
    done = a.newlabel("done")
    a("s_cmp_ge_u32 s2, 256")
    a(f"s_cbranch_scc1 {done}")
    a(f"s_load_dwordx2 s[6:7], s[0:1], {KA['ws']}")
    a(f"s_load_dwordx4 s[36:39], s[0:1], {KA['Wq']}")
    a(f"s_load_dwordx4 s[40:43], s[0:1], {KA['Wv']}")
    a(f"s_load_dwordx2 s[44:45], s[0:1], {KA['mem0']}")
    a("v_and_b32 v1, 63, v0")
    a("v_lshrrev_b32 v2, 6, v0")
    a("s_nop 0")
    a("v_readfirstlane_b32 s46, v2")
    a("s_and_b32 s47, s2, 31")
    a("s_lshr_b32 s48, s2, 5")
    a(f"s_mov_b32 s50, {SCALE_HEX}")
    a(f"s_mov_b32 s51, {LOG2E_HEX}")
    a("v_and_b32 v8, 15, v1")
    a("v_lshrrev_b32 v9, 4, v1")
    a("v_and_b32 v10, 7, v8")
    a("s_waitcnt lgkmcnt(0)")
    srd(a, 8, 6, WS_BYTES)
    srd(a, 12, 36, SZ['Wq'])
    srd(a, 16, 38, SZ['Wk'])
    srd(a, 20, 40, SZ['Wv'])
    srd(a, 24, 42, SZ['Wo'])
    srd(a, 28, 44, SZ['mem0'])
    a("v_cmp_gt_u32 vcc, 8, v8")
    a("s_mov_b64 s[52:53], vcc")
    a("v_cmp_gt_u32 vcc, 32, v1")
    a("s_mov_b64 s[54:55], vcc")
    a("s_mul_i32 s56, s46, 160")
    a("v_lshl_add_u32 v3, v9, 3, s56")
    a("v_mul_u32_u24 v3, 12288, v3")
    a("s_mul_i32 s56, s47, 384")
    a("s_mul_i32 s57, s48, 48")
    a("s_add_u32 s56, s56, s57")
    a("v_add_u32 v3, s56, v3")
    a("v_lshl_add_u32 v4, v8, 1, v3")
    a("v_lshl_add_u32 v5, v10, 1, v3")
    a("v_add_u32 v5, 32, v5")
    def wbatch(items, kstride):
        TB = 108
        for b in range(0, len(items), 32):
            bt = items[b:b+32]
            for i, (areg, voff, srdb, so) in enumerate(bt):
                a(f"s_mov_b32 s58, {so}")
                a(f"buffer_load_ushort v{TB+2*i}, v{voff}, s[{srdb}:{srdb+3}], s58 offen")
                a(f"s_mov_b32 s58, {so + kstride}")
                a(f"buffer_load_ushort v{TB+2*i+1}, v{voff}, s[{srdb}:{srdb+3}], s58 offen")
            a("s_waitcnt vmcnt(0)")
            for i, (areg, voff, srdb, so) in enumerate(bt):
                a(f"v_lshl_or_b32 v{TB+2*i}, v{TB+2*i+1}, 16, v{TB+2*i}")
                a(f"v_accvgpr_write_b32 a{areg}, v{TB+2*i}")
    items = []
    for ks in range(5):
        for jj in range(4):
            so = (32*ks + 2*jj)*12288
            items += [((ks*5+0)*4+jj, 4, 12, so), ((ks*5+1)*4+jj, 4, 16, so), ((ks*5+2)*4+jj, 4, 20, so), ((ks*5+4)*4+jj, 5, 20, so)]
    wbatch(items, 12288)
    a("s_mov_b64 exec, s[52:53]")
    wbatch([((ks*5+3)*4+jj, 5, 12, (32*ks + 2*jj)*12288) for ks in range(5) for jj in range(4)], 12288)
    a("s_not_b64 exec, s[52:53]")
    wbatch([((ks*5+3)*4+jj, 5, 16, (32*ks + 2*jj)*12288) for ks in range(5) for jj in range(4)], 12288)
    a("s_mov_b64 exec, -1")
    a("s_mul_i32 s56, s47, 192")
    a("v_lshl_add_u32 v3, v9, 3, s56")
    a("v_mul_u32_u24 v3, 1280, v3")
    a("s_mul_i32 s56, s48, 160")
    a("v_add_u32 v3, s56, v3")
    a("v_lshl_add_u32 v3, v8, 1, v3")
    a("s_lshl_b32 s56, s46, 5")
    a("v_add_u32 v4, s56, v3")
    a("v_add_u32 v5, 128, v3")
    items = []
    for ks in range(6):
        for jj in range(4):
            so = (32*ks + 2*jj)*1280
            items += [(100 + ks*4 + jj, 4, 24, so), (124 + ks*4 + jj, 5, 24, so)]
    wbatch(items, 1280)
    a(f"v_mul_u32_u24 v11, {MRS}, v10")
    a("s_mul_i32 s56, s46, 320")
    a("v_lshl_add_u32 v11, v9, 4, v11")
    a("v_add_u32 v11, s56, v11")
    a("v_mul_u32_u24 v12, 320, v8")
    a("v_lshl_add_u32 v12, v9, 4, v12")
    a("s_mul_i32 s56, s46, 2560")
    a(f"s_add_u32 s56, s56, {L_PART}")
    a("v_add_u32 v12, s56, v12")
    a("v_cmp_gt_u32 vcc, 2, v9")
    a("v_mov_b32 v3, 128")
    a("v_mov_b32 v4, 64")
    a("v_cndmask_b32 v3, v3, v4, vcc")
    a("v_add_u32 v13, v12, v3")
    for i in range(5):
        a(f"v_add_u32 v3, {256*i}, v0")
        a("v_mov_b32 v4, 0x199999a")
        a("v_mul_hi_u32 v4, v3, v4")
        a("v_mul_u32_u24 v5, 160, v4")
        a("v_sub_u32 v5, v3, v5")
        a("v_mov_b32 v6, 0xccccccd")
        a("v_mul_hi_u32 v6, v5, v6")
        a("v_mul_u32_u24 v7, 20, v6")
        a("v_sub_u32 v7, v5, v7")
        a(f"v_mul_u32_u24 v{14+i}, {MRS}, v6")
        a("v_mul_u32_u24 v4, 160, v4")
        a(f"v_add_u32 v{14+i}, v{14+i}, v4")
        a(f"v_lshl_add_u32 v{14+i}, v7, 3, v{14+i}")
    a("v_lshlrev_b32 v19, 4, v0")
    a("v_mov_b32 v3, 0x15555556")
    a("v_mul_hi_u32 v3, v0, v3")
    a("v_mul_u32_u24 v4, 12, v3")
    a("v_sub_u32 v4, v0, v4")
    a("v_mul_u32_u24 v20, 320, v3")
    a("v_mul_u32_u24 v5, 24, v4")
    a(f"v_add3_u32 v20, v20, v5, {0}")
    a(f"v_add_u32 v20, {L_PART}, v20")
    a("v_mul_u32_u24 v21, 12288, v3")
    a("v_and_b32 v5, 3, v4")
    a("v_mul_u32_u24 v5, 12, v5")
    a("v_add_u32 v21, v21, v5")
    a("s_mul_i32 s56, s47, 384")
    a("s_mul_i32 s57, s48, 48")
    a("s_add_u32 s56, s56, s57")
    a("v_add_u32 v21, s56, v21")
    a("v_cmp_le_u32 vcc, 8, v4")
    a(f"v_mov_b32 v5, {VM-KM}")
    a("v_cndmask_b32 v5, 0, v5, vcc")
    a("v_add_u32 v21, v21, v5")
    a("v_cmp_gt_u32 vcc, 96, v0")
    a("s_mov_b64 s[60:61], vcc")
    a("v_cmp_le_u32 vcc, 4, v4")
    a("s_and_b64 s[62:63], vcc, s[60:61]")
    for i in range(3):
        a(f"v_add_u32 v3, {256*i}, v0")
        a("v_mov_b32 v4, 0x2aaaaab")
        a("v_mul_hi_u32 v4, v3, v4")
        a("v_mul_u32_u24 v5, 96, v4")
        a("v_sub_u32 v5, v3, v5")
        a("v_lshl_add_u32 v6, v4, 5, s47")
        a("v_mul_u32_u24 v6, 1536, v6")
        a(f"v_lshl_add_u32 v{22+i}, v5, 4, v6")
        a("v_mov_b32 v6, 0x15555556")
        a("v_mul_hi_u32 v6, v5, v6")
        a("v_mul_u32_u24 v7, 12, v6")
        a("v_sub_u32 v7, v5, v7")
        a("v_lshrrev_b32 v31, 2, v7")
        a("v_and_b32 v7, 3, v7")
        a("v_mul_u32_u24 v7, 12, v7")
        a("v_mul_u32_u24 v4, 48, v4")
        a("v_add_u32 v7, v7, v4")
        a(f"v_mul_u32_u24 v4, {QRS}, v6")
        a("v_mul_u32_u24 v32, 3200, v31")
        a(f"v_add3_u32 v4, v4, v32, v7")
        a(f"v_add_u32 v4, {L_Q}, v4")
        a(f"v_mul_u32_u24 v32, {VRS}, v6")
        a(f"v_add3_u32 v32, v32, v7, {0}")
        a(f"v_add_u32 v32, {L_V + 32*VRS}, v32")
        a("v_cmp_eq_u32 vcc, 2, v31")
        a("s_nop 1")
        a(f"v_cndmask_b32 v{25+i}, v4, v32, vcc")
        a(f"v_mov_b32 v32, {VBUF}")
        a(f"v_cndmask_b32 v{28+i}, 0, v32, vcc")
    a(f"v_mul_u32_u24 v31, {QRS}, v10")
    a("v_lshl_add_u32 v31, v9, 4, v31")
    a(f"v_add_u32 v31, {L_Q}, v31")
    a("v_lshrrev_b32 v3, 2, v8")
    a("v_lshl_add_u32 v3, v9, 2, v3")
    a(f"v_mul_u32_u24 v32, {VRS}, v3")
    a("v_and_b32 v4, 3, v1")
    a("v_lshl_add_u32 v32, v4, 3, v32")
    a("s_mul_i32 s56, s46, 96")
    a(f"s_add_u32 s56, s56, {L_V}")
    a("v_add_u32 v32, s56, v32")
    a(f"v_mul_u32_u24 v33, {QRS}, v8")
    a("v_lshl_add_u32 v33, v9, 3, v33")
    a("s_mul_i32 s56, s46, 96")
    a(f"s_add_u32 s56, s56, {L_O}")
    a("v_add_u32 v33, s56, v33")
    a(f"v_mul_u32_u24 v34, {QRS}, v10")
    a("v_lshl_add_u32 v34, v9, 4, v34")
    a(f"v_add_u32 v34, {L_O}, v34")
    a("v_mul_u32_u24 v35, 1280, v9")
    a("v_lshl_add_u32 v35, v8, 2, v35")
    a("s_mul_i32 s56, s48, 2560")
    a("v_add_u32 v35, s56, v35")
    a("s_lshl_b32 s56, s46, 6")
    a("v_add_u32 v36, s56, v35")
    a("v_mul_u32_u24 v37, 12288, v8")
    a("v_lshl_add_u32 v37, v9, 4, v37")
    a("s_mul_i32 s56, s47, 384")
    a("v_add_u32 v37, s56, v37")
    for i in range(3):
        a(f"v_add_u32 v3, {256*i}, v0")
        a("v_mov_b32 v4, 0xaaaaaab")
        a("v_mul_hi_u32 v4, v3, v4")
        a("v_mul_u32_u24 v5, 24, v4")
        a("v_sub_u32 v5, v3, v5")
        a("v_mul_u32_u24 v6, 12288, v4")
        a(f"v_lshl_add_u32 v{38+i}, v5, 4, v6")
        a(f"v_add_u32 v{38+i}, s56, v{38+i}")
        a(f"v_mul_u32_u24 v6, {VRS}, v4")
        a(f"v_lshl_add_u32 v{41+i}, v5, 4, v6")
        a(f"v_add_u32 v{41+i}, {L_V}, v{41+i}")
    a("v_and_b32 v44, 31, v1")
    a("v_lshlrev_b32 v44, 7, v44")
    a("v_mov_b32 v4, 0"); a("v_mov_b32 v5, 0"); a("v_mov_b32 v6, 0"); a("v_mov_b32 v7, 0")
    a("v_cmp_gt_u32 vcc, 208, v0")
    a("s_and_saveexec_b64 s[64:65], vcc")
    a(f"ds_write_b128 v19, v[4:7] offset:{L_V + 40*VRS}")
    a(f"ds_write_b128 v19, v[4:7] offset:{L_V + VBUF + 40*VRS}")
    a("s_mov_b64 exec, s[64:65]")
    KF = 48
    VST = 96
    T = 108
    def prefetch(sreg_step):
        a(f"s_mul_i32 s58, s{sreg_step}, {32*12288}")
        a(f"s_add_u32 s59, s58, {KX}")
        for kt in range(2):
            for ks in range(6):
                r = KF + (kt*6+ks)*4
                a(f"buffer_load_dwordx4 v[{r}:{r+3}], v37, s[8:11], s59 offen offset:{ks*64}")
            a(f"s_add_u32 s59, s59, {16*12288}")
        a(f"s_add_u32 s59, s58, {VX}")
        for i in range(3):
            a(f"buffer_load_dwordx4 v[{VST+4*i}:{VST+4*i+3}], v{38+i}, s[8:11], s59 offen")
    def vwrite(par_sreg):
        for i in range(3):
            a(f"v_add_u32 v3, s{par_sreg}, v{41+i}")
            a(f"ds_write_b128 v3, v[{VST+4*i}:{VST+4*i+3}]")
    a("s_mov_b32 s66, 0")
    prefetch(66)
    for i in range(3):
        a(f"v_add_u32 v3, {256*i}, v0")
        a("v_mov_b32 v4, 0x3333334")
        a("v_mul_hi_u32 v4, v3, v4")
        a("v_mul_u32_u24 v5, 80, v4")
        a("v_sub_u32 v5, v3, v5")
        a(f"v_mul_u32_u24 v6, {MRS}, v4")
        a(f"v_lshl_add_u32 v{T+12+i}, v5, 4, v6")
        a("v_lshlrev_b32 v3, 4, v3")
        a(f"buffer_load_dwordx4 v[{T+4*i}:{T+4*i+3}], v3, s[28:31], 0 offen")
    a("s_waitcnt vmcnt(0)")
    a("ds_write_b128 v%d, v[%d:%d]" % (T+12, T, T+3))
    a("ds_write_b128 v%d, v[%d:%d]" % (T+13, T+4, T+7))
    a("v_cmp_gt_u32 vcc, 128, v0")
    a("s_and_saveexec_b64 s[64:65], vcc")
    a("ds_write_b128 v%d, v[%d:%d]" % (T+14, T+8, T+11))
    a("s_mov_b64 exec, s[64:65]")
    a("s_mov_b32 s67, 0")
    vwrite(67)
    loop = a.newlabel("step")
    after_mem = a.newlabel("aftermem")
    bail = a.newlabel("bail")
    a(f"s_branch {after_mem}")
    a.label(loop)
    notw0 = a.newlabel("notw0")
    a("s_cmp_lg_u32 s46, 0")
    a(f"s_cbranch_scc1 {notw0}")
    a(f"s_lshl_b32 s58, s66, 12")
    a(f"s_add_u32 s58, s58, {CNT}")
    a("s_mov_b32 s59, 0")
    poll = a.newlabel("poll")
    a.label(poll)
    a("buffer_load_dword v3, v44, s[8:11], s58 offen sc1")
    a("s_waitcnt vmcnt(0)")
    a("v_cmp_ne_u32 vcc, 8, v3")
    a(f"s_cbranch_vccz {notw0}")
    a("s_sleep 1")
    a("s_add_u32 s59, s59, 1")
    a(f"s_cmp_lt_u32 s59, {POLL_CAP}")
    a(f"s_cbranch_scc1 {poll}")
    a(f"s_branch {bail}")
    a.label(notw0)
    a("s_barrier")
    a(f"s_mul_i32 s58, s66, 20480")
    a(f"s_add_u32 s58, s58, {ACC}")
    for i in range(5):
        a(f"buffer_load_dwordx4 v[{T+4*i}:{T+4*i+3}], v19, s[8:11], s58 offen offset:{0} sc1" if i == 0 else
          f"buffer_load_dwordx4 v[{T+4*i}:{T+4*i+3}], v19, s[8:11], s59 offen sc1")
        a(f"s_add_u32 s59, s58, {4096*(i+1)}")
    for i in range(5):
        a(f"s_waitcnt vmcnt({4-i})")
        a(f"v_cvt_pk_bf16_f32 v{T+20}, v{T+4*i}, v{T+4*i+1}")
        a(f"v_cvt_pk_bf16_f32 v{T+21}, v{T+4*i+2}, v{T+4*i+3}")
        a(f"ds_write_b64 v{14+i}, v[{T+20}:{T+21}]")
        a("s_nop 0")
    a.label(after_mem)
    a("s_waitcnt lgkmcnt(0)")
    a("s_barrier")
    MF = T
    DA = T + 20
    for ks in range(5):
        a(f"ds_read_b128 v[{MF+4*ks}:{MF+4*ks+3}], v11 offset:{64*ks}")
    for i in range(20):
        a(f"v_mov_b32 v{DA+i}, 0")
    for ks in range(5):
        a(f"s_waitcnt lgkmcnt({4-ks})")
        for t in range(5):
            ar_ = (ks*5+t)*4
            a(f"v_mfma_f32_16x16x32_bf16 v[{DA+4*t}:{DA+4*t+3}], a[{ar_}:{ar_+3}], v[{MF+4*ks}:{MF+4*ks+3}], v[{DA+4*t}:{DA+4*t+3}]")
    a("s_nop 7")
    a("s_mov_b64 exec, s[52:53]")
    a(f"ds_write_b128 v12, v[{DA}:{DA+3}]")
    a(f"ds_write_b128 v12, v[{DA+4}:{DA+7}] offset:96")
    a(f"ds_write_b128 v12, v[{DA+8}:{DA+11}] offset:192")
    a(f"ds_write_b128 v13, v[{DA+12}:{DA+15}]")
    a(f"ds_write_b128 v12, v[{DA+16}:{DA+19}] offset:256")
    a("s_mov_b64 exec, -1")
    a("s_waitcnt lgkmcnt(0)")
    a("s_barrier")
    a("s_and_b32 s68, s66, 1")
    a(f"s_mul_i32 s68, s68, {256*1536}")
    a(f"s_add_u32 s68, s68, {XB}")
    a("s_mul_i32 s69, s2, 1536")
    a("s_add_u32 s69, s69, s68")
    a("s_add_u32 s70, s66, 1")
    a("s_mov_b64 exec, s[60:61]")
    R = T
    for w in range(4):
        for q in range(3):
            a(f"ds_read_b64 v[{R+w*6+2*q}:{R+w*6+2*q+1}], v20 offset:{w*2560 + 8*q}")
    a("s_waitcnt lgkmcnt(0)")
    for q in range(6):
        a(f"v_add_f32 v{R+q}, v{R+q}, v{R+6+q}")
        a(f"v_add_f32 v{R+q}, v{R+q}, v{R+12+q}")
        a(f"v_add_f32 v{R+q}, v{R+q}, v{R+18+q}")
    P4 = T + 24
    a(f"v_cvt_pk_bf16_f32 v{P4}, v{R}, v{R+1}")
    a(f"v_cvt_pk_bf16_f32 v{P4+1}, v{R+2}, v{R+3}")
    a(f"v_cvt_pk_bf16_f32 v{P4+2}, v{R+4}, v{R+5}")
    a(f"v_mov_b32 v{P4+3}, s70")
    a("s_nop 0")
    a(f"buffer_store_dwordx4 v[{P4}:{P4+3}], v19, s[8:11], s69 offen sc1")
    a("s_mov_b64 exec, s[62:63]")
    a(f"s_mul_i32 s58, s66, {8*12288}")
    a(f"s_add_u32 s58, s58, {KM}")
    a(f"buffer_store_dwordx3 v[{P4}:{P4+2}], v21, s[8:11], s58 offen")
    a("s_mov_b64 exec, -1")
    GR = T
    a("s_mov_b32 s59, 0")
    gp = a.newlabel("gpoll")
    gok = a.newlabel("gok")
    a.label(gp)
    for i in range(3):
        a(f"buffer_load_dwordx4 v[{GR+4*i}:{GR+4*i+3}], v{22+i}, s[8:11], s68 offen sc1")
    a("s_waitcnt vmcnt(0)")
    a(f"v_cmp_ne_u32 vcc, s70, v{GR+3}")
    a(f"v_cmp_ne_u32 s[64:65], s70, v{GR+7}")
    a("s_or_b64 vcc, vcc, s[64:65]")
    a(f"v_cmp_ne_u32 s[64:65], s70, v{GR+11}")
    a("s_or_b64 vcc, vcc, s[64:65]")
    a(f"s_cbranch_vccz {gok}")
    a("s_sleep 1")
    a("s_add_u32 s59, s59, 1")
    a(f"s_cmp_lt_u32 s59, {POLL_CAP}")
    a(f"s_cbranch_scc1 {gp}")
    a(f"s_branch {bail}")
    a.label(gok)
    a("s_and_b32 s58, s66, 1")
    for i in range(3):
        a(f"v_mul_u32_u24 v3, s58, v{28+i}")
        a(f"v_add_u32 v3, v3, v{25+i}")
        a(f"ds_write2_b32 v3, v{GR+4*i}, v{GR+4*i+1} offset0:0 offset1:1")
        a(f"ds_write_b32 v3, v{GR+4*i+2} offset:8")
    a("s_waitcnt lgkmcnt(0)")
    a("s_barrier")
    QF = T
    K2 = T + 24
    SA = T + 48
    PF = T + 60
    VF = T + 68
    OA = T + 92
    for ks in range(6):
        a(f"ds_read_b128 v[{QF+4*ks}:{QF+4*ks+3}], v31 offset:{64*ks}")
    for ks in range(6):
        a(f"ds_read_b128 v[{K2+4*ks}:{K2+4*ks+3}], v31 offset:{3200 + 64*ks}")
    a(f"s_mul_i32 s58, s58, {VBUF}")
    a("v_add_u32 v3, s58, v32")
    for dt in range(3):
        b = VF + dt*8
        for kt in range(3):
            a(f"ds_read_b64_tr_b16 v[{b+2*kt}:{b+2*kt+1}], v3 offset:{kt*16*VRS + dt*32}")
        a(f"v_mov_b32 v{b+6}, 0")
        a(f"v_mov_b32 v{b+7}, 0")
    for i in range(12):
        a(f"v_mov_b32 v{SA+i}, 0")
        a(f"v_mov_b32 v{OA+i}, 0")
    a("s_waitcnt lgkmcnt(9)")
    for ks in range(6):
        for kt in range(3):
            kf = (KF + (kt*6+ks)*4) if kt < 2 else (K2 + 4*ks)
            a(f"v_mfma_f32_16x16x32_bf16 v[{SA+4*kt}:{SA+4*kt+3}], v[{kf}:{kf+3}], v[{QF+4*ks}:{QF+4*ks+3}], v[{SA+4*kt}:{SA+4*kt+3}]")
    a("s_nop 7")
    a("s_nop 1")
    regs = [SA + i for i in range(12)]
    round_scale(a, regs, 3, 50)
    a(f"v_mov_b32 v4, {NEGBIG}")
    a("v_cmp_gt_u32 vcc, 2, v9")
    a("s_nop 1")
    for r in range(4):
        a(f"v_cndmask_b32 v{SA+8+r}, v4, v{SA+8+r}, vcc")
    softmax_rows(a, regs, 4, 5, 3, 51)
    for i in range(6):
        a(f"v_cvt_pk_bf16_f32 v{PF+i}, v{regs[2*i]}, v{regs[2*i+1]}")
    a(f"v_mov_b32 v{PF+6}, 0")
    a(f"v_mov_b32 v{PF+7}, 0")
    a("s_waitcnt lgkmcnt(0)")
    a("s_nop 1")
    for dt in range(3):
        b = VF + dt*8
        a(f"v_mfma_f32_16x16x32_bf16 v[{OA+4*dt}:{OA+4*dt+3}], v[{b}:{b+3}], v[{PF}:{PF+3}], v[{OA+4*dt}:{OA+4*dt+3}]")
        a(f"v_mfma_f32_16x16x32_bf16 v[{OA+4*dt}:{OA+4*dt+3}], v[{b+4}:{b+7}], v[{PF+4}:{PF+7}], v[{OA+4*dt}:{OA+4*dt+3}]")
    a("s_cmp_ge_u32 s66, 63")
    a(f"s_cbranch_scc1 {done}")
    a("s_add_u32 s71, s66, 1")
    prefetch(71)
    a("s_nop 7")
    a("s_mov_b64 exec, s[52:53]")
    for dt in range(3):
        a(f"v_cvt_pk_bf16_f32 v4, v{OA+4*dt}, v{OA+4*dt+1}")
        a(f"v_cvt_pk_bf16_f32 v5, v{OA+4*dt+2}, v{OA+4*dt+3}")
        a(f"ds_write_b64 v33, v[4:5] offset:{dt*32}")
        a("s_nop 0")
    a("s_mov_b64 exec, -1")
    a("s_waitcnt lgkmcnt(0)")
    a("s_barrier")
    OF = T
    WA = T + 24
    for ks in range(6):
        a(f"ds_read_b128 v[{OF+4*ks}:{OF+4*ks+3}], v34 offset:{64*ks}")
    for i in range(8):
        a(f"v_mov_b32 v{WA+i}, 0")
    for ks in range(6):
        a(f"s_waitcnt lgkmcnt({5-ks})")
        a(f"v_mfma_f32_16x16x32_bf16 v[{WA}:{WA+3}], v[{OF+4*ks}:{OF+4*ks+3}], a[{100+4*ks}:{103+4*ks}], v[{WA}:{WA+3}]")
        a(f"v_mfma_f32_16x16x32_bf16 v[{WA+4}:{WA+7}], v[{OF+4*ks}:{OF+4*ks+3}], a[{124+4*ks}:{127+4*ks}], v[{WA+4}:{WA+7}]")
    a("s_nop 7")
    a("s_mul_i32 s58, s71, 20480")
    a(f"s_add_u32 s58, s58, {ACC}")
    a("s_mov_b64 exec, s[54:55]")
    for r in range(4):
        a(f"buffer_atomic_add_f32 v{WA+r}, v36, s[8:11], s58 offen offset:{320*r}")
    sk = a.newlabel("skipt4")
    a("s_cmp_lg_u32 s46, 0")
    a(f"s_cbranch_scc1 {sk}")
    for r in range(4):
        a(f"buffer_atomic_add_f32 v{WA+4+r}, v35, s[8:11], s58 offen offset:{320*r + 256}")
    a.label(sk)
    a("s_mov_b64 exec, -1")
    a("s_waitcnt vmcnt(0)")
    a(f"s_xor_b32 s67, s67, {VBUF}")
    vwrite(67)
    a("s_barrier")
    c2 = a.newlabel("nocnt")
    a("s_cmp_lg_u32 s46, 0")
    a(f"s_cbranch_scc1 {c2}")
    a("s_lshl_b32 s58, s71, 12")
    a("s_lshl_b32 s59, s47, 7")
    a("s_add_u32 s58, s58, s59")
    a(f"s_add_u32 s58, s58, {CNT}")
    a("v_mov_b32 v3, 1")
    a("v_mov_b32 v4, 0")
    a("s_mov_b64 exec, 1")
    a("buffer_atomic_add v3, v4, s[8:11], s58 offen")
    a("s_mov_b64 exec, -1")
    a.label(c2)
    a("s_mov_b32 s66, s71")
    a(f"s_branch {loop}")
    a.label(bail)
    a.label(done)
    a("s_endpgm")
    kernel_end(a, name, 256 + 148, 80, accum=256)
    return 256, 96*1024
```

```python
import sys
from asmlib import Asm, vr, sr, ar

NAME = "sequential_preLN__memory_aug_recurrent_mem_tr__glu_gated_bilinear__prompt"
XN   = 0x0000000
QX   = 0x0400000
KX   = 0x1C00000
VX   = 0x3400000
KM   = 0x4C00000
VM   = 0x5200000
OO   = 0x5800000
HH   = 0x7000000
HN   = 0x7400000
ACT  = 0x7800000
ZERO = 0x8000000
ACC  = ZERO
CNT  = ZERO + 0x180000
XB   = ZERO + 0x200000
WS_BYTES = 0x10000000
KA = dict(x=0, mem0=8, Wq=16, Wk=24, Wv=32, Wo=40, seg=48, Bx=56, wg=64, wu=72, wd=80, out=88, dbg=96, ws=104)
SZ = dict(x=2621440, mem0=10240, Wq=7864320, Wk=7864320, Wv=7864320, Wo=7864320, wg=1966080, wu=1966080, wd=1966080, out=2621440, ws=WS_BYTES)

def srd(a, d, base, size):
    a(f"s_mov_b32 s{d}, s{base}")
    a(f"s_and_b32 s{d+1}, s{base+1}, 0xffff")
    a(f"s_mov_b32 s{d+2}, {size}")
    a(f"s_mov_b32 s{d+3}, 0x20000")

def kernel_begin(a, name):
    a.raw(".text")
    a.raw(f".globl {name}")
    a.raw(".p2align 8")
    a.raw(f".type {name},@function")
    a.label(name)

def kernel_end(a, name, vgpr, sgpr=100, lds=0, accum=None):
    vg = vgpr
    acc = accum if accum is not None else ((vgpr + 3)//4)*4
    a.raw('.section .rodata,"a"')
    a.raw(".p2align 6")
    a.raw(f".amdhsa_kernel {name}")
    a.raw(f"  .amdhsa_next_free_vgpr {vg}")
    a.raw(f"  .amdhsa_next_free_sgpr {sgpr}")
    a.raw(f"  .amdhsa_accum_offset {acc}")
    a.raw("  .amdhsa_group_segment_fixed_size 0")
    a.raw("  .amdhsa_kernarg_size 112")
    a.raw("  .amdhsa_user_sgpr_count 2")
    a.raw("  .amdhsa_user_sgpr_kernarg_segment_ptr 1")
    a.raw("  .amdhsa_system_sgpr_workgroup_id_x 1")
    a.raw(".end_amdhsa_kernel")

def wave_sum(a, v, sdst):
    for sh in (1, 2, 4, 8):
        a("s_nop 1")
        a(f"v_add_f32_dpp v{v}, v{v}, v{v} row_shr:{sh} row_mask:0xf bank_mask:0xf bound_ctrl:0")
    a("s_nop 1")
    a(f"v_add_f32_dpp v{v}, v{v}, v{v} row_bcast:15 row_mask:0xa bank_mask:0xf")
    a("s_nop 1")
    a(f"v_add_f32_dpp v{v}, v{v}, v{v} row_bcast:31 row_mask:0xc bank_mask:0xf")
    a("s_nop 1")
    a(f"v_readlane_b32 s{sdst}, v{v}, 63")
    a("s_nop 3")

def gen_ln(a, name, src_ws_off, dst_off, zero):
    kernel_begin(a, name)
    done = a.newlabel("done")
    a(f"s_cmp_ge_u32 s2, 512")
    a(f"s_cbranch_scc1 {done}")
    a(f"s_load_dwordx2 s[4:5], s[0:1], {KA['x']}")
    a(f"s_load_dwordx2 s[6:7], s[0:1], {KA['ws']}")
    a("v_lshrrev_b32 v1, 6, v0")
    a("v_and_b32 v2, 63, v0")
    a("s_lshl_b32 s3, s2, 2")
    a("v_add_u32 v1, s3, v1")
    a("v_mul_u32_u24 v3, 1280, v1")
    a("v_lshl_add_u32 v3, v2, 2, v3")
    a("s_waitcnt lgkmcnt(0)")
    srd(a, 8, 4, SZ['x'])
    srd(a, 12, 6, WS_BYTES)
    if src_ws_off is None:
        ssrd, soff = 8, 0
    else:
        ssrd, soff = 12, src_ws_off
    a(f"s_mov_b32 s16, {soff}")
    a(f"s_mov_b32 s17, {dst_off}")
    for i in range(5):
        a(f"buffer_load_dword v{4+i}, v3, s[{ssrd}:{ssrd+3}], s16 offen offset:{i*256}")
    if zero:
        a("s_lshl_b32 s18, s2, 13")
        a(f"s_add_u32 s18, s18, {ZERO}")
        a("v_lshlrev_b32 v40, 4, v0")
        a("v_mov_b32 v44, 0"); a("v_mov_b32 v45, 0"); a("v_mov_b32 v46, 0"); a("v_mov_b32 v47, 0")
        a("buffer_store_dwordx4 v[44:47], v40, s[12:15], s18 offen")
        a("s_add_u32 s18, s18, 4096")
        a("buffer_store_dwordx4 v[44:47], v40, s[12:15], s18 offen")
        a("s_waitcnt vmcnt(2)")
    else:
        a("s_waitcnt vmcnt(0)")
    for i in range(5):
        a(f"v_lshlrev_b32 v{10+2*i}, 16, v{4+i}")
        a(f"v_and_b32 v{11+2*i}, 0xffff0000, v{4+i}")
    a("v_add_f32 v20, v10, v11")
    for i in range(2, 10):
        a(f"v_add_f32 v20, v20, v{10+i}")
    wave_sum(a, 20, 20)
    a("v_mov_b32 v21, 0x3acccccd")
    a("v_mov_b32 v22, 0x44200000")
    a("v_rcp_f32 v23, v22")
    a("s_nop 0")
    a("v_mul_f32 v24, s20, v23")
    a("v_fma_f32 v25, -v24, v22, s20")
    a("v_fma_f32 v24, v25, v23, v24")
    a("v_sub_f32 v26, v10, v24")
    a("v_mul_f32 v20, v26, v26")
    for i in range(1, 10):
        a(f"v_sub_f32 v26, v{10+i}, v24")
        a("v_fma_f32 v20, v26, v26, v20")
    wave_sum(a, 20, 21)
    a("v_mul_f32 v27, s21, v23")
    a("v_fma_f32 v25, -v27, v22, s21")
    a("v_fma_f32 v27, v25, v23, v27")
    a("v_cvt_pk_bf16_f32 v28, v24, v27")
    a("s_nop 0")
    a("v_lshlrev_b32 v24, 16, v28")
    a("v_and_b32 v27, 0xffff0000, v28")
    a("v_add_f32 v27, 0x3727c5ac, v27")
    a("v_cvt_pk_bf16_f32 v28, v27, v27")
    a("s_nop 0")
    a("v_lshlrev_b32 v27, 16, v28")
    a("v_sqrt_f32 v27, v27")
    a("s_nop 0")
    a("v_cvt_pk_bf16_f32 v28, v27, v27")
    a("s_nop 0")
    a("v_lshlrev_b32 v27, 16, v28")
    a("v_rcp_f32 v29, v27")
    a("s_nop 0")
    for i in range(5):
        a(f"v_sub_f32 v30, v{10+2*i}, v24")
        a(f"v_sub_f32 v31, v{11+2*i}, v24")
        a("v_cvt_pk_bf16_f32 v32, v30, v31")
        a("s_nop 0")
        a("v_lshlrev_b32 v30, 16, v32")
        a("v_and_b32 v31, 0xffff0000, v32")
        a("v_mul_f32 v33, v30, v29")
        a("v_mul_f32 v34, v31, v29")
        a("v_fma_f32 v35, -v33, v27, v30")
        a("v_fma_f32 v36, -v34, v27, v31")
        a("v_fma_f32 v33, v35, v29, v33")
        a("v_fma_f32 v34, v36, v29, v34")
        a(f"v_cvt_pk_bf16_f32 v{4+i}, v33, v34")
    a("s_nop 1")
    for i in range(5):
        a(f"buffer_store_dword v{4+i}, v3, s[12:15], s17 offen offset:{i*256}")
    a.label(done)
    a("s_endpgm")
    kernel_end(a, name, 48, 32)

def gen_gemm(a, name, M, K, BM, parts, BNp, n_tiles, a_off, epi, lda=None):
    lda = lda or K
    KT = K // 64
    NP = len(parts)
    TM = BM // 32
    TN = BNp // 32
    NA = BM // 32
    RPI = 1024 // (BNp * 2)
    NB = (64 // RPI) // 4
    A_BYTES = BM * 128
    B_BYTES = 64 * BNp * 2
    STAGE = A_BYTES + NP * B_BYTES
    nwg = n_tiles * (M // BM)
    kernel_begin(a, name)
    done = a.newlabel("done")
    a(f"s_cmp_ge_u32 s2, {nwg}")
    a(f"s_cbranch_scc1 {done}")
    a(f"s_load_dwordx2 s[6:7], s[0:1], {KA['ws']}")
    magic = (2**32 + n_tiles - 1) // n_tiles
    a(f"s_mov_b32 s30, {magic}")
    a("s_mul_hi_u32 s31, s2, s30")
    a(f"s_mul_i32 s32, s31, {n_tiles}")
    a("s_sub_u32 s32, s2, s32")
    if epi['kind'] == 'qkv':
        a(f"s_mov_b32 s30, {(2**32 + 47)//48}")
        a("s_mul_hi_u32 s33, s32, s30")
        a("s_mul_i32 s34, s33, 48")
        a("s_sub_u32 s34, s32, s34")
        a("s_lshl_b32 s35, s33, 3")
        a(f"s_add_u32 s35, s35, {KA['Wq']}")
        a("s_load_dwordx2 s[4:5], s[0:1], s35")
    else:
        a("s_mov_b32 s34, s32")
        a("s_mov_b32 s33, 0")
        for p, (pn, ldb) in enumerate(parts):
            a(f"s_load_dwordx2 s[{4 if p == 0 else 36}:{5 if p == 0 else 37}], s[0:1], {KA[pn]}")
    if epi['kind'] == 'res_out':
        a(f"s_load_dwordx2 s[38:39], s[0:1], {KA['out']}")
    if epi['kind'] == 'res_x':
        a(f"s_load_dwordx2 s[38:39], s[0:1], {KA['x']}")
    a("v_and_b32 v60, 63, v0")
    a("v_lshrrev_b32 v61, 6, v0")
    a("s_nop 0")
    a("v_readfirstlane_b32 s40, v61")
    a("s_nop 3")
    a("s_lshr_b32 s41, s40, 1")
    a("s_and_b32 s42, s40, 1")
    a("s_waitcnt lgkmcnt(0)")
    srd(a, 8, 6, WS_BYTES)
    srd(a, 12, 4, SZ['Wq'] if epi['kind'] in ('qkv', 'res_x') else SZ[parts[0][0]])
    if NP == 2:
        srd(a, 16, 36, SZ[parts[1][0]])
    if epi['kind'] == 'res_out':
        srd(a, 20, 38, SZ['out'])
    if epi['kind'] == 'res_x':
        srd(a, 20, 38, SZ['x'])
    a("v_lshrrev_b32 v62, 3, v60")
    a("v_and_b32 v63, 7, v60")
    a("v_xor_b32 v63, v63, v62")
    a("v_lshlrev_b32 v63, 4, v63")
    a(f"s_mul_i32 s43, s40, {NA*8}")
    a("v_add_u32 v62, s43, v62")
    a(f"s_mov_b32 s44, {lda*2}")
    a("v_mul_lo_u32 v62, v62, s44")
    a("v_add_u32 v1, v62, v63")
    for j in range(1, NA):
        a(f"v_add_u32 v{1+j}, {j*8*lda*2}, v1")
    VB = 1 + NA
    LPR = BNp // 8
    lsh = {8: 3, 16: 4}[LPR]
    a(f"v_lshrrev_b32 v62, {lsh}, v60")
    a(f"v_and_b32 v63, {LPR-1}, v60")
    a("v_lshrrev_b32 v64, 1, v63")
    a("v_and_b32 v63, 1, v63")
    for p, (pn, ldb) in enumerate(parts):
        for j in range(NB):
            v = VB + p*NB + j
            if BNp == 128:
                a(f"v_or_b32 v65, {((j>>1)&1)<<2}, v62")
            else:
                a("v_lshrrev_b32 v65, 4, v60")
                a("v_and_b32 v65, 1, v65")
                a(f"v_or_b32 v65, {(j&1)<<1}, v65")
            a("v_xor_b32 v65, v64, v65")
            a("v_lshlrev_b32 v65, 5, v65")
            a("v_lshl_add_u32 v65, v63, 4, v65")
            a(f"s_mul_i32 s43, s40, {NB*RPI}")
            a(f"s_add_u32 s43, s43, {j*RPI}")
            a("v_add_u32 v66, s43, v62")
            a(f"s_mov_b32 s44, {ldb*2}")
            a("v_mul_lo_u32 v66, v66, s44")
            a(f"v_add_u32 v{v}, v66, v65")
    VA_RD = VB + NP*NB
    VB_RD = VA_RD + 2
    a("v_and_b32 v62, 15, v60")
    a("v_lshrrev_b32 v63, 4, v60")
    a("v_and_b32 v64, 7, v60")
    a("v_xor_b32 v64, v64, v63")
    a(f"s_mul_i32 s43, s41, {BM//2}")
    a("v_add_u32 v62, s43, v62")
    a("v_lshlrev_b32 v62, 7, v62")
    a(f"v_lshl_add_u32 v{VA_RD}, v64, 4, v62")
    a("v_xor_b32 v64, 4, v64")
    a(f"v_lshl_add_u32 v{VA_RD+1}, v64, 4, v62")
    RS = BNp * 2
    a("v_and_b32 v62, 15, v60")
    a("v_lshrrev_b32 v62, 2, v62")
    a("v_and_b32 v64, 3, v60")
    a("v_lshl_add_u32 v65, v63, 3, v62")
    a(f"v_mul_u32_u24 v65, {RS}, v65")
    a("v_lshl_add_u32 v65, v64, 3, v65")
    a("v_and_b32 v66, 1, v63")
    if BNp == 128:
        a("v_lshl_or_b32 v66, v66, 2, v62")
    else:
        a("v_lshrrev_b32 v67, 1, v62")
        a("v_and_b32 v67, 1, v67")
        a("v_lshl_or_b32 v66, v66, 1, v67")
    a(f"s_mul_i32 s43, s42, {TN}")
    for p in range(NP):
        for tn in range(TN):
            a(f"s_add_u32 s44, s43, {tn}")
            a("v_xor_b32 v67, s44, v66")
            a(f"v_lshl_add_u32 v{VB_RD + p*TN + tn}, v67, 5, v65")
            a(f"v_add_u32 v{VB_RD + p*TN + tn}, {A_BYTES + p*B_BYTES}, v{VB_RD + p*TN + tn}")
    FA = ((VB_RD + NP*TN + 3)//4)*4
    FB = FA + 2*TM*4
    ACCB = FB + 2*NP*TN*4
    NACC = NP*TN*TM*4
    VEND = ACCB + NACC
    assert VEND <= 256, VEND
    for i in range(NACC):
        a(f"v_mov_b32 v{ACCB+i}, 0")
    a(f"s_mul_i32 s45, s31, {BM*lda*2}")
    a(f"s_add_u32 s45, s45, {a_off}")
    a(f"s_mul_i32 s46, s34, {BNp*2}")
    ldb0 = parts[0][1]
    def dma(stage):
        for j in range(NA):
            a(f"s_mul_i32 s47, s40, {NA*1024}")
            a(f"s_add_u32 s47, s47, {stage*STAGE + j*1024}")
            a("s_mov_b32 m0, s47")
            a("s_nop 0")
            a(f"buffer_load_dwordx4 v{1+j}, s[8:11], s45 offen lds")
        for p in range(NP):
            for j in range(NB):
                a(f"s_mul_i32 s47, s40, {NB*1024}")
                a(f"s_add_u32 s47, s47, {stage*STAGE + A_BYTES + p*B_BYTES + j*1024}")
                a("s_mov_b32 m0, s47")
                a("s_nop 0")
                sd = 12 + 4*p
                a(f"buffer_load_dwordx4 v{VB + p*NB + j}, s[{sd}:{sd+3}], s46 offen lds")
        a("s_add_u32 s45, s45, 128")
        a(f"s_add_u32 s46, s46, {64*ldb0*2}")
    def compute(stage):
        base = stage*STAGE
        nrd = 0
        for ks in range(2):
            for tm in range(TM):
                a(f"ds_read_b128 v[{FA + (ks*TM+tm)*4}:{FA + (ks*TM+tm)*4+3}], v{VA_RD+ks} offset:{base + tm*2048}")
            for p in range(NP):
                for tn in range(TN):
                    r = FB + ((ks*NP + p)*TN + tn)*4
                    for hf in range(2):
                        a(f"ds_read_b64_tr_b16 v[{r+2*hf}:{r+2*hf+1}], v{VB_RD + p*TN + tn} offset:{base + (ks*32 + hf*4)*RS}")
        per = TM + NP*TN*2
        for ks in range(2):
            a(f"s_waitcnt lgkmcnt({per if ks == 0 else 0})")
            for p in range(NP):
                for tn in range(TN):
                    for tm in range(TM):
                        acc = ACCB + ((p*TN + tn)*TM + tm)*4
                        fb = FB + ((ks*NP + p)*TN + tn)*4
                        fa = FA + (ks*TM + tm)*4
                        a(f"v_mfma_f32_16x16x32_bf16 v[{acc}:{acc+3}], v[{fb}:{fb+3}], v[{fa}:{fa+3}], v[{acc}:{acc+3}]")
    dma(0)
    a("s_waitcnt vmcnt(0)")
    a("s_barrier")
    a("s_mov_b32 s48, 0")
    loop = a.newlabel("loop")
    a.label(loop)
    dma(1)
    compute(0)
    a("s_waitcnt vmcnt(0)")
    a("s_barrier")
    skip = a.newlabel("skip")
    a(f"s_cmp_ge_u32 s48, {KT-2}")
    a(f"s_cbranch_scc1 {skip}")
    dma(0)
    a.label(skip)
    compute(1)
    a("s_waitcnt vmcnt(0)")
    a("s_barrier")
    a("s_add_u32 s48, s48, 2")
    a(f"s_cmp_lt_u32 s48, {KT}")
    a(f"s_cbranch_scc1 {loop}")
    a("s_nop 7")
    a("s_nop 7")
    kind = epi['kind']
    ldc = epi['ldc']
    a("v_and_b32 v60, 63, v0")
    a("v_and_b32 v62, 15, v60")
    a(f"s_mul_i32 s43, s41, {BM//2}")
    a("v_add_u32 v62, s43, v62")
    a(f"s_mov_b32 s44, {ldc*2}")
    a("v_mul_lo_u32 v62, v62, s44")
    a("v_lshrrev_b32 v63, 4, v60")
    a("v_lshlrev_b32 v63, 3, v63")
    a(f"s_mul_i32 s43, s42, {BNp}")
    a("v_add3_u32 v62, v62, v63, s43")
    a(f"s_mul_i32 s45, s31, {BM*ldc*2}")
    a(f"s_mul_i32 s46, s34, {BNp*2}")
    a("s_add_u32 s45, s45, s46")
    if kind == 'qkv':
        a(f"s_mul_i32 s46, s33, {0x1800000}")
        a("s_add_u32 s45, s45, s46")
    a("s_mov_b32 s49, s45")
    a(f"s_add_u32 s45, s45, {epi.get('c_off', 0)}")
    if kind in ('res_ws', 'res_out'):
        a(f"s_add_u32 s49, s49, {epi['r_off']}")
    T0 = FA
    for tm in range(TM):
        for tn in range(TN):
            if kind in ('res_x', 'res_ws', 'res_out'):
                k = (tm*TN + tn) % 8
                rs = 20 if kind == 'res_x' else 8
                a(f"buffer_load_dwordx2 v[{T0+2*k}:{T0+2*k+1}], v62, s[{rs}:{rs+3}], s49 offen offset:{tn*32}")
        a("s_waitcnt vmcnt(0)")
        for tn in range(TN):
            if kind == 'glu':
                g = ACCB + ((0*TN + tn)*TM + tm)*4
                u = ACCB + ((1*TN + tn)*TM + tm)*4
                t = T0 + 16
                a(f"v_cvt_pk_bf16_f32 v{t}, v{g}, v{g+1}")
                a(f"v_cvt_pk_bf16_f32 v{t+1}, v{g+2}, v{g+3}")
                a(f"v_cvt_pk_bf16_f32 v{t+2}, v{u}, v{u+1}")
                a(f"v_cvt_pk_bf16_f32 v{t+3}, v{u+2}, v{u+3}")
                a("s_nop 0")
                for q in range(2):
                    a(f"v_lshlrev_b32 v{t+4}, 16, v{t+q}")
                    a(f"v_and_b32 v{t+5}, 0xffff0000, v{t+q}")
                    a(f"v_lshlrev_b32 v{t+6}, 16, v{t+2+q}")
                    a(f"v_and_b32 v{t+7}, 0xffff0000, v{t+2+q}")
                    a(f"v_mul_f32 v{t+4}, v{t+4}, v{t+6}")
                    a(f"v_mul_f32 v{t+5}, v{t+5}, v{t+7}")
                    a(f"v_cvt_pk_bf16_f32 v{t+8+q}, v{t+4}, v{t+5}")
                a("s_nop 0")
                a(f"buffer_store_dwordx2 v[{t+8}:{t+9}], v62, s[8:11], s45 offen offset:{tn*32}")
            else:
                g = ACCB + (tn*TM + tm)*4
                t = T0 + 16
                a(f"v_cvt_pk_bf16_f32 v{t}, v{g}, v{g+1}")
                a(f"v_cvt_pk_bf16_f32 v{t+1}, v{g+2}, v{g+3}")
                if kind in ('res_x', 'res_ws', 'res_out'):
                    k = (tm*TN + tn) % 8
                    a("s_nop 0")
                    for q in range(2):
                        a(f"v_lshlrev_b32 v{t+4}, 16, v{t+q}")
                        a(f"v_and_b32 v{t+5}, 0xffff0000, v{t+q}")
                        a(f"v_lshlrev_b32 v{t+6}, 16, v{T0+2*k+q}")
                        a(f"v_and_b32 v{t+7}, 0xffff0000, v{T0+2*k+q}")
                        a(f"v_add_f32 v{t+4}, v{t+4}, v{t+6}")
                        a(f"v_add_f32 v{t+5}, v{t+5}, v{t+7}")
                        a(f"v_cvt_pk_bf16_f32 v{t+q}, v{t+4}, v{t+5}")
                a("s_nop 0")
                cs = 20 if kind == 'res_out' else 8
                a(f"buffer_store_dwordx2 v[{t}:{t+1}], v62, s[{cs}:{cs+3}], s45 offen offset:{tn*32}")
        if tm + 1 < TM:
            a(f"s_add_u32 s45, s45, {16*ldc*2}")
            a(f"s_add_u32 s49, s49, {16*ldc*2}")
    a.label(done)
    a("s_endpgm")
    kernel_end(a, name, max(VEND, 68), 64)
    return nwg, 2*STAGE

def main():
    a = Asm()
    launches = []
    body = Asm()
    gen_ln(body, "ln1_kernel", None, XN, True)
    launches.append(("ln1_kernel", 512, 256, 0))
    nwg, lds = gen_gemm(body, "qkv_kernel", 2048, 640, 128, [('Wq', 6144)], 128, 144, XN,
                        dict(kind='qkv', ldc=6144, c_off=QX))
    launches.append(("qkv_kernel", nwg, 256, lds))
    from gen_attn import gen_xattn
    import os
    from gen_chain2 import gen_chain2
    nwg, lds = gen_chain2(body, "chain_kernel")
    launches.append(("chain_kernel", nwg, 512, lds))
    nwg, lds = gen_xattn(body, "xattn_kernel")
    launches.append(("xattn_kernel", nwg, 256, lds))
    nwg, lds = gen_gemm(body, "oproj_kernel", 2048, 6144, 64, [('Wo', 640)], 64, 10, OO,
                        dict(kind='res_x', ldc=640, c_off=HH))
    launches.append(("oproj_kernel", nwg, 256, lds))
    gen_ln(body, "ln2_kernel", HH, HN, False)
    launches.append(("ln2_kernel", 512, 256, 0))
    nwg, lds = gen_gemm(body, "glu_kernel", 2048, 640, 128, [('wg', 1536), ('wu', 1536)], 64, 24, HN,
                        dict(kind='glu', ldc=1536, c_off=ACT))
    launches.append(("glu_kernel", nwg, 256, lds))
    nwg, lds = gen_gemm(body, "down_kernel", 2048, 1536, 64, [('wd', 640)], 64, 10, ACT,
                        dict(kind='res_out', ldc=640, c_off=0, r_off=HH))
    launches.append(("down_kernel", nwg, 256, lds))
    hdr = open('cdna_kernels/%s.s.ref' % NAME).read().split('\n')
    out = []
    for l in hdr:
        if l.startswith('; @launch'):
            break
        out.append(l)
    for (k, g, b, l) in launches:
        out.append(f"; @launch kernel={k} grid=({g},1,1) block=({b},1,1) lds={l}")
    out.append('.amdgcn_target "amdgcn-amd-amdhsa--gfx950"')
    txt = '\n'.join(out) + '\n' + body.text()
    open('cdna_kernels/%s.s' % NAME, 'w').write(txt)
    print("wrote", len(txt), "bytes")

if __name__ == '__main__':
    main()
```

```python
from asmlib import Asm, vr, sr, ar
from gen import *
from gen_attn import round_scale, softmax_rows, SCALE_HEX, LOG2E_HEX, NEGBIG, VRS

XB2 = ZERO + 0x000000
PB2 = ZERO + 0x100000
LB2 = ZERO + 0x280000
CB2 = ZERO + 0x300000
MRS = 1296
QRS = 400
L_MEM = 0
L_PART = 10496
L_Q = 31488
L_K = 34688
L_O = 37888
L_KX = 41088
L_V = 66688
L_END = 106624
KBUF = 32 * QRS
VBUF = 48 * VRS
POLL_CAP = 1 << 18

def gen_chain2(a, name):
    kernel_begin(a, name)
    done = a.newlabel("done")
    bail = a.newlabel("bail")
    a("s_cmp_ge_u32 s2, 256")
    a(f"s_cbranch_scc1 {done}")
    a(f"s_load_dwordx2 s[6:7], s[0:1], {KA['ws']}")
    a(f"s_load_dwordx4 s[36:39], s[0:1], {KA['Wq']}")
    a(f"s_load_dwordx4 s[40:43], s[0:1], {KA['Wv']}")
    a(f"s_load_dwordx2 s[44:45], s[0:1], {KA['mem0']}")
    a(f"s_load_dwordx2 s[4:5], s[0:1], {KA['dbg']}")
    a("v_and_b32 v1, 63, v0")
    a("v_lshrrev_b32 v2, 6, v0")
    a("s_nop 0")
    a("v_readfirstlane_b32 s46, v2")
    a(f"s_mov_b32 s50, {SCALE_HEX}")
    a(f"s_mov_b32 s51, {LOG2E_HEX}")
    a("v_and_b32 v8, 15, v1")
    a("v_lshrrev_b32 v9, 4, v1")
    a("v_and_b32 v10, 7, v8")
    a("s_waitcnt lgkmcnt(0)")
    srd(a, 8, 6, WS_BYTES)
    srd(a, 12, 36, SZ['Wq'])
    srd(a, 16, 38, SZ['Wk'])
    srd(a, 20, 40, SZ['Wv'])
    srd(a, 24, 42, SZ['Wo'])
    srd(a, 28, 44, SZ['mem0'])
    srd(a, 32, 4, 256)
    role_done = a.newlabel("role_done")
    a("s_cmp_lg_u32 s46, 0")
    a(f"s_cbranch_scc1 {role_done}")
    a("s_getreg_b32 s56, hwreg(HW_REG_XCC_ID)")
    a("s_and_b32 s56, s56, 7")
    a("s_lshl_b32 s57, s56, 2")
    a("s_mov_b64 exec, 1")
    a("v_mov_b32 v3, 1")
    a("v_mov_b32 v4, s57")
    a("v_mov_b32 v5, 1")
    a("v_mov_b32 v6, 64")
    a("buffer_atomic_add v3, v4, s[32:35], 0 offen sc0")
    a("buffer_atomic_add v5, v6, s[32:35], 0 offen sc0")
    a("s_waitcnt vmcnt(0)")
    a("s_mov_b64 exec, -1")
    a("v_readfirstlane_b32 s58, v3")
    a("v_readfirstlane_b32 s59, v5")
    a("v_min_u32 v4, 8, v1")
    a("v_lshlrev_b32 v4, 2, v4")
    a("v_cmp_le_u32 vcc, 8, v1")
    a("v_mov_b32 v5, 64")
    a("v_cndmask_b32 v4, v4, v5, vcc")
    a("v_mov_b32 v6, 32")
    a("v_mov_b32 v7, 256")
    a("v_cndmask_b32 v6, v6, v7, vcc")
    a("s_mov_b32 s60, 0")
    rp = a.newlabel("rpoll"); rok = a.newlabel("rok")
    a.label(rp)
    a("buffer_load_dword v3, v4, s[32:35], 0 offen sc1")
    a("s_waitcnt vmcnt(0)")
    a("v_readlane_b32 s61, v3, 8")
    a("s_cmp_eq_u32 s61, 256")
    a(f"s_cbranch_scc1 {rok}")
    a("s_sleep 2")
    a("s_add_u32 s60, s60, 1")
    a(f"s_cmp_lt_u32 s60, {POLL_CAP}")
    a(f"s_cbranch_scc1 {rp}")
    a.label(rok)
    a("buffer_load_dword v3, v4, s[32:35], 0 offen sc1")
    a("s_waitcnt vmcnt(0)")
    a("v_cmp_ne_u32 vcc, v3, v6")
    a("s_lshl_b32 s61, s56, 4")
    a("s_add_u32 s61, s61, s58")
    a("s_cmp_lt_u32 s58, 16")
    a("s_cselect_b32 s61, s61, 0x1000")
    a("s_cmp_lt_u32 s59, 128")
    a("s_cselect_b32 s62, s59, 0x1000")
    a("s_or_b32 s62, s62, 0x10000")
    a("s_cmp_eq_u64 vcc, 0")
    a("s_cselect_b32 s61, s61, s62")
    a("v_mov_b32 v3, s61")
    a("v_mov_b32 v4, 0")
    a("ds_write_b32 v4, v3")
    a.label(role_done)
    a("s_waitcnt lgkmcnt(0)")
    a("s_barrier")
    a("v_mov_b32 v4, 0")
    a("ds_read_b32 v3, v4")
    a("s_waitcnt lgkmcnt(0)")
    a("v_readfirstlane_b32 s61, v3")
    a("s_barrier")
    a("s_lshr_b32 s72, s61, 16")
    a("s_and_b32 s73, s61, 0xffff")
    a("s_cmp_ge_u32 s73, 128")
    a(f"s_cbranch_scc1 {done}")
    a("s_lshr_b32 s47, s73, 2")
    a("s_and_b32 s48, s73, 3")
    a("s_lshr_b32 s74, s73, 4")
    a("s_and_b32 s75, s47, 3")
    a("s_and_b32 s76, s46, 3")
    a("s_lshr_b32 s77, s46, 2")
    a("v_cmp_gt_u32 vcc, 8, v8")
    a("s_mov_b64 s[52:53], vcc")
    TB = 56
    def wbatch(items, kstride):
        for b in range(0, len(items), 24):
            bt = items[b:b+24]
            for i, (areg, voff, srdb, so) in enumerate(bt):
                a(f"s_mov_b32 s58, {so}")
                a(f"buffer_load_ushort v{TB+2*i}, v{voff}, s[{srdb}:{srdb+3}], s58 offen")
                a(f"s_mov_b32 s58, {so + kstride}")
                a(f"buffer_load_ushort v{TB+2*i+1}, v{voff}, s[{srdb}:{srdb+3}], s58 offen")
            a("s_waitcnt vmcnt(0)")
            for i, (areg, voff, srdb, so) in enumerate(bt):
                a(f"v_lshl_or_b32 v{TB+2*i}, v{TB+2*i+1}, 16, v{TB+2*i}")
                a(f"v_accvgpr_write_b32 a{areg}, v{TB+2*i}")
    a("s_mul_i32 s56, s76, 160")
    a("v_lshl_add_u32 v3, v9, 3, s56")
    a("v_mul_u32_u24 v3, 12288, v3")
    a("s_mul_i32 s56, s47, 384")
    a("s_mul_i32 s57, s48, 96")
    a("s_add_u32 s56, s56, s57")
    a("v_add_u32 v3, s56, v3")
    a("v_lshl_add_u32 v3, v8, 1, v3")
    for i in range(5):
        a(f"s_mul_i32 s56, s77, 5")
        a(f"s_add_u32 s56, s56, {i}")
        a("s_min_u32 s56, s56, 8")
        a("s_mul_i32 s57, s56, 0x5556")
        a("s_lshr_b32 s57, s57, 16")
        a("s_mul_i32 s59, s57, 3")
        a("s_sub_u32 s59, s56, s59")
        a("s_lshl_b32 s59, s59, 5")
        a("v_add_u32 v4, s59, v3")
        a("s_cmp_eq_u32 s57, 0")
        a("s_cselect_b32 s64, s12, s16")
        a("s_cselect_b32 s65, s13, s17")
        a("s_cmp_eq_u32 s57, 2")
        a("s_cselect_b32 s64, s20, s64")
        a("s_cselect_b32 s65, s21, s65")
        a("s_mov_b32 s66, s14")
        a("s_mov_b32 s67, s15")
        wbatch([((ks*5+i)*4+jj, 4, 64, (32*ks+2*jj)*12288) for ks in range(5) for jj in range(4)], 12288)
    a("s_mul_i32 s56, s47, 192")
    a("v_lshl_add_u32 v3, v9, 3, s56")
    a("v_mul_u32_u24 v3, 1280, v3")
    a("s_mul_i32 s56, s48, 320")
    a("v_add_u32 v3, s56, v3")
    a("v_lshl_add_u32 v3, v8, 1, v3")
    a("s_lshl_b32 s56, s46, 5")
    a("v_add_u32 v4, s56, v3")
    a("s_and_b32 s56, s46, 1")
    a("s_lshl_b32 s56, s56, 5")
    a("s_add_u32 s56, s56, 256")
    a("v_add_u32 v5, s56, v3")
    items = []
    for ks in range(6):
        for jj in range(4):
            so = (32*ks + 2*jj)*1280
            items += [(100 + ks*4 + jj, 4, 24, so), (124 + ks*4 + jj, 5, 24, so)]
    wbatch(items, 1280)
    a(f"v_mul_u32_u24 v11, {MRS}, v10")
    a("s_mul_i32 s56, s76, 320")
    a("v_lshl_add_u32 v11, v9, 4, v11")
    a("v_add_u32 v11, s56, v11")
    a("v_mul_u32_u24 v12, 656, v8")
    a("v_lshl_add_u32 v12, v9, 4, v12")
    a("s_mul_i32 s56, s76, 5248")
    a("s_mul_i32 s57, s77, 320")
    a("s_add_u32 s56, s56, s57")
    a(f"s_add_u32 s56, s56, {L_PART}")
    a("v_add_u32 v12, s56, v12")
    a("v_lshlrev_b32 v13, 4, v0")
    a("v_mov_b32 v3, 0xaaaaaab")
    a("v_mul_hi_u32 v3, v0, v3")
    a("v_mul_u32_u24 v4, 24, v3")
    a("v_sub_u32 v4, v0, v4")
    a("v_mul_u32_u24 v14, 656, v3")
    a("v_mul_u32_u24 v5, 24, v4")
    a("v_add_u32 v14, v14, v5")
    a(f"v_add_u32 v14, {L_PART}, v14")
    a("v_mul_u32_u24 v15, 12288, v3")
    a("v_and_b32 v5, 7, v4")
    a("v_mul_u32_u24 v5, 12, v5")
    a("v_add_u32 v15, v15, v5")
    a("s_mul_i32 s56, s47, 384")
    a("s_mul_i32 s57, s48, 96")
    a("s_add_u32 s56, s56, s57")
    a("v_add_u32 v15, s56, v15")
    a("v_cmp_le_u32 vcc, 16, v4")
    a(f"v_mov_b32 v5, {VM-KM}")
    a("v_cndmask_b32 v5, 0, v5, vcc")
    a("v_add_u32 v15, v15, v5")
    a("v_cmp_gt_u32 vcc, 192, v0")
    a("s_mov_b64 s[60:61], vcc")
    a("v_cmp_le_u32 vcc, 8, v4")
    a("s_and_b64 s[62:63], vcc, s[60:61]")
    a("v_cmp_gt_u32 vcc, 256, v0")
    a("s_mov_b64 s[78:79], vcc")
    a("v_cmp_gt_u32 vcc, 320, v0")
    a("s_mov_b64 s[80:81], vcc")
    a("v_cmp_gt_u32 vcc, 80, v0")
    a("s_mov_b64 s[82:83], vcc")
    for i in range(2):
        a(f"v_add_u32 v3, {512*i}, v0")
        a("v_mov_b32 v4, 0x1555556")
        a("v_mul_hi_u32 v4, v3, v4")
        a("v_mul_u32_u24 v5, 192, v4")
        a("v_sub_u32 v5, v3, v5")
        a("s_lshl_b32 s56, s47, 2")
        a("v_add_u32 v6, s56, v4")
        a("v_mul_u32_u24 v6, 3072, v6")
        a(f"v_lshl_add_u32 v{16+i}, v5, 4, v6")
        a("v_mov_b32 v6, 0xaaaaaab")
        a("v_mul_hi_u32 v6, v5, v6")
        a("v_mul_u32_u24 v7, 24, v6")
        a("v_sub_u32 v7, v5, v7")
        a("v_lshrrev_b32 v22, 3, v7")
        a("v_and_b32 v7, 7, v7")
        a("v_mul_u32_u24 v7, 12, v7")
        a("v_mul_u32_u24 v4, 96, v4")
        a("v_add_u32 v7, v7, v4")
        a(f"v_mul_u32_u24 v4, {QRS}, v6")
        a("v_mul_u32_u24 v23, 3200, v22")
        a("v_add3_u32 v4, v4, v23, v7")
        a(f"v_add_u32 v4, {L_Q}, v4")
        a(f"v_mul_u32_u24 v23, {VRS}, v6")
        a("v_add_u32 v23, v23, v7")
        a(f"v_add_u32 v23, {L_V + 32*VRS}, v23")
        a("v_cmp_eq_u32 vcc, 2, v22")
        a("s_nop 1")
        a(f"v_cndmask_b32 v{18+i}, v4, v23, vcc")
        a(f"v_mov_b32 v23, {VBUF}")
        a(f"v_cndmask_b32 v{20+i}, 0, v23, vcc")
    a(f"v_mul_u32_u24 v22, {QRS}, v10")
    a("v_lshl_add_u32 v22, v9, 4, v22")
    a(f"v_add_u32 v22, {L_Q}, v22")
    a(f"v_mul_u32_u24 v23, {QRS}, v8")
    a("v_lshl_add_u32 v23, v9, 4, v23")
    a(f"v_add_u32 v23, {L_KX}, v23")
    a("s_mul_i32 s84, s46, 96")
    a("v_lshrrev_b32 v3, 2, v8")
    a("v_lshl_add_u32 v3, v9, 2, v3")
    a(f"v_mul_u32_u24 v24, {VRS}, v3")
    a("v_and_b32 v4, 3, v1")
    a("v_lshl_add_u32 v24, v4, 3, v24")
    a(f"v_add_u32 v24, {L_V}, v24")
    a(f"v_mul_u32_u24 v25, {QRS}, v8")
    a("v_lshl_add_u32 v25, v9, 3, v25")
    a(f"v_add_u32 v25, {L_O}, v25")
    a(f"v_mul_u32_u24 v26, {QRS}, v10")
    a("v_lshl_add_u32 v26, v9, 4, v26")
    a(f"v_add_u32 v26, {L_O}, v26")
    a("v_mul_u32_u24 v27, 640, v8")
    a("v_lshl_add_u32 v27, v9, 4, v27")
    a("s_and_b32 s56, s46, 1")
    a("s_add_u32 s56, s56, 8")
    a("s_lshl_b32 s56, s56, 6")
    a("v_add_u32 v28, s56, v27")
    a("s_lshl_b32 s56, s46, 6")
    a("v_add_u32 v27, s56, v27")
    a("s_lshl_b32 s56, s74, 4")
    a("s_add_u32 s56, s56, s48")
    a("s_mul_i32 s56, s56, 5120")
    a("s_mul_i32 s57, s75, 1280")
    a("s_add_u32 s56, s56, s57")
    a("v_add_u32 v29, s56, v13")
    a("s_lshl_b32 s56, s75, 2")
    a("s_add_u32 s56, s56, s48")
    a("s_mul_i32 s56, s56, 1280")
    a("v_add_u32 v30, s56, v13")
    for i in range(3):
        a(f"v_add_u32 v3, {512*i}, v0")
        a("v_mov_b32 v4, 0x3333334")
        a("v_mul_hi_u32 v4, v3, v4")
        a("v_mul_u32_u24 v5, 80, v4")
        a("v_sub_u32 v5, v3, v5")
        a("s_lshl_b32 s56, s74, 4")
        a("v_add_u32 v6, s56, v4")
        a("v_mul_u32_u24 v6, 1280, v6")
        a(f"v_lshl_add_u32 v{31+i}, v5, 4, v6")
        a("v_cmp_le_u32 vcc, 40, v5")
        a("v_cndmask_b32 v6, 0, 1, vcc")
        a("v_mul_u32_u24 v7, 40, v6")
        a("v_sub_u32 v7, v5, v7")
        a("v_lshrrev_b32 v3, 2, v4")
        a("v_lshl_add_u32 v6, v3, 1, v6")
        a(f"v_mul_u32_u24 v6, {MRS}, v6")
        a("v_and_b32 v4, 3, v4")
        a("v_mul_u32_u24 v4, 320, v4")
        a("v_add_u32 v6, v6, v4")
        a(f"v_lshl_add_u32 v{34+i}, v7, 3, v6")
    for i in range(3):
        a(f"v_add_u32 v3, {512*i}, v0")
        a("v_cmp_le_u32 vcc, 768, v3")
        a("v_cndmask_b32 v4, 0, 1, vcc")
        a("v_mul_u32_u24 v5, 768, v4")
        a("v_sub_u32 v5, v3, v5")
        a("v_mov_b32 v6, 0xaaaaaab")
        a("v_mul_hi_u32 v6, v5, v6")
        a("v_mul_u32_u24 v7, 24, v6")
        a("v_sub_u32 v7, v5, v7")
        a(f"v_mul_u32_u24 v{37+i}, 12288, v6")
        a(f"v_lshl_add_u32 v{37+i}, v7, 4, v{37+i}")
        a("s_mul_i32 s56, s47, 384")
        a(f"v_add_u32 v{37+i}, s56, v{37+i}")
        a(f"v_mov_b32 v3, {KX}")
        a(f"v_mov_b32 v5, {VX}")
        a("v_cndmask_b32 v3, v3, v5, vcc")
        a(f"v_add_u32 v{37+i}, v{37+i}, v3")
        a(f"v_mul_u32_u24 v3, {QRS}, v6")
        a(f"v_add_u32 v3, {L_KX}, v3")
        a(f"v_mul_u32_u24 v5, {VRS}, v6")
        a(f"v_add_u32 v5, {L_V}, v5")
        a("v_cndmask_b32 v3, v3, v5, vcc")
        a(f"v_lshl_add_u32 v{40+i}, v7, 4, v3")
        a(f"v_mov_b32 v3, {KBUF}")
        a(f"v_mov_b32 v5, {VBUF}")
        a(f"v_cndmask_b32 v{43+i}, v3, v5, vcc")
    ST = 46
    ST = 48
    T = 60
    a("v_mov_b32 v4, 0"); a("v_mov_b32 v5, 0"); a("v_mov_b32 v6, 0"); a("v_mov_b32 v7, 0")
    a("v_cmp_gt_u32 vcc, 208, v0")
    a("s_and_saveexec_b64 s[64:65], vcc")
    a(f"v_add_u32 v3, {L_V + 40*VRS}, v13")
    a(f"ds_write_b128 v3, v[4:7]")
    a(f"ds_write_b128 v3, v[4:7] offset:{VBUF}")
    a("s_mov_b64 exec, s[64:65]")
    def prefetch(sstep):
        a(f"s_mul_i32 s58, s{sstep}, {32*12288}")
        for i in range(3):
            a(f"buffer_load_dwordx4 v[{ST+4*i}:{ST+4*i+3}], v{37+i}, s[8:11], s58 offen")
    def pwrite(spar):
        for i in range(3):
            a(f"v_mul_u32_u24 v3, s{spar}, v{43+i}")
            a(f"v_add_u32 v3, v3, v{40+i}")
            a(f"ds_write_b128 v3, v[{ST+4*i}:{ST+4*i+3}]")
    def store_scoped(txt):
        l1 = a.newlabel("stf"); l2 = a.newlabel("ste")
        a("s_cmp_eq_u32 s72, 0")
        a(f"s_cbranch_scc1 {l1}")
        a(txt + " sc1")
        a(f"s_branch {l2}")
        a.label(l1)
        a(txt)
        a.label(l2)
    import os
    STAMP = os.environ.get("STAMP")
    def stamp(k):
        if not STAMP: return
        a("s_memtime s[90:91]")
        a("s_waitcnt lgkmcnt(0)")
        a(f"v_writelane_b32 v47, s90, {k}")
    def stamp_flush():
        if not STAMP: return
        l = a.newlabel("nost")
        a("s_cmp_lg_u32 s46, 0")
        a(f"s_cbranch_scc1 {l}")
        a("s_mul_i32 s90, s73, 64")
        a("s_add_u32 s90, s90, s66")
        a("s_lshl_b32 s90, s90, 8")
        a(f"s_add_u32 s90, s90, {0xA000000}")
        a("v_lshlrev_b32 v3, 2, v1")
        a("buffer_store_dword v47, v3, s[8:11], s90 offen")
        a.label(l)
    a("s_mov_b32 s66, 0")
    prefetch(66)
    for i in range(2):
        a(f"v_add_u32 v3, {512*i}, v0")
        a("v_mov_b32 v4, 0x3333334")
        a("v_mul_hi_u32 v4, v3, v4")
        a("v_mul_u32_u24 v5, 80, v4")
        a("v_sub_u32 v5, v3, v5")
        a(f"v_mul_u32_u24 v6, {MRS}, v4")
        a(f"v_lshl_add_u32 v{T+8+i}, v5, 4, v6")
        a("v_lshlrev_b32 v3, 4, v3")
        a(f"buffer_load_dwordx4 v[{T+4*i}:{T+4*i+3}], v3, s[28:31], 0 offen")
    a("s_waitcnt vmcnt(0)")
    a(f"ds_write_b128 v{T+8}, v[{T}:{T+3}]")
    a("v_cmp_gt_u32 vcc, 128, v0")
    a("s_and_saveexec_b64 s[64:65], vcc")
    a(f"ds_write_b128 v{T+9}, v[{T+4}:{T+7}]")
    a("s_mov_b64 exec, s[64:65]")
    a("s_mov_b32 s67, 0")
    pwrite(67)
    loop = a.newlabel("step")
    after_mem = a.newlabel("aftermem")
    a(f"s_branch {after_mem}")
    a.label(loop)
    stamp(0)
    a("s_add_u32 s58, s66, 1")
    a("s_and_b32 s58, s58, 1")
    a(f"s_mul_i32 s58, s58, {128*1280}")
    a(f"s_add_u32 s58, s58, {LB2}")
    a("s_mov_b32 s59, 0")
    lp = a.newlabel("lpoll"); lok = a.newlabel("lok")
    a.label(lp)
    a(f"v_mov_b32 v{T+10}, s66")
    a(f"buffer_load_dwordx4 v[{T}:{T+3}], v31, s[8:11], s58 offen sc1")
    a(f"buffer_load_dwordx4 v[{T+4}:{T+7}], v32, s[8:11], s58 offen sc1")
    a("s_mov_b64 exec, s[78:79]")
    a(f"buffer_load_dwordx4 v[{T+8}:{T+11}], v33, s[8:11], s58 offen sc1")
    a("s_mov_b64 exec, -1")
    a("s_waitcnt vmcnt(0)")
    a(f"v_cmp_ne_u32 vcc, s66, v{T+2}")
    a(f"v_cmp_ne_u32 s[64:65], s66, v{T+6}")
    a("s_or_b64 vcc, vcc, s[64:65]")
    a(f"v_cmp_ne_u32 s[64:65], s66, v{T+10}")
    a("s_or_b64 vcc, vcc, s[64:65]")
    a(f"s_cbranch_vccz {lok}")
    a("s_sleep 1")
    a("s_add_u32 s59, s59, 1")
    a(f"s_cmp_lt_u32 s59, {POLL_CAP}")
    a(f"s_cbranch_scc1 {lp}")
    a(f"s_branch {bail}")
    a.label(lok)
    stamp(1)
    a(f"ds_write_b64 v34, v[{T}:{T+1}]")
    a(f"ds_write_b64 v35, v[{T+4}:{T+5}]")
    a("s_mov_b64 exec, s[78:79]")
    a(f"ds_write_b64 v36, v[{T+8}:{T+9}]")
    a("s_mov_b64 exec, -1")
    a.label(after_mem)
    a("s_waitcnt lgkmcnt(0)")
    a("s_barrier")
    stamp(2)
    MF = T; DA = T + 20
    for ks in range(5):
        a(f"ds_read_b128 v[{MF+4*ks}:{MF+4*ks+3}], v11 offset:{64*ks}")
    for i in range(20):
        a(f"v_mov_b32 v{DA+i}, 0")
    for ks in range(5):
        a(f"s_waitcnt lgkmcnt({4-ks})")
        for t in range(5):
            ar_ = (ks*5+t)*4
            a(f"v_mfma_f32_16x16x32_bf16 v[{DA+4*t}:{DA+4*t+3}], a[{ar_}:{ar_+3}], v[{MF+4*ks}:{MF+4*ks+3}], v[{DA+4*t}:{DA+4*t+3}]")
    a("s_nop 7")
    a("s_mov_b64 exec, s[52:53]")
    for t in range(5):
        a(f"ds_write_b128 v12, v[{DA+4*t}:{DA+4*t+3}] offset:{64*t}")
    a("s_mov_b64 exec, -1")
    a("s_waitcnt lgkmcnt(0)")
    a("s_barrier")
    stamp(3)
    a("s_and_b32 s68, s66, 1")
    a(f"s_mul_i32 s68, s68, {128*3072}")
    a(f"s_add_u32 s68, s68, {XB2}")
    a("s_mul_i32 s69, s73, 3072")
    a("s_add_u32 s69, s69, s68")
    a("s_add_u32 s70, s66, 1")
    a("s_mov_b64 exec, s[60:61]")
    R = T
    for w in range(4):
        for q in range(3):
            a(f"ds_read_b64 v[{R+w*6+2*q}:{R+w*6+2*q+1}], v14 offset:{w*5248 + 8*q}")
    a("s_waitcnt lgkmcnt(0)")
    for q in range(6):
        a(f"v_add_f32 v{R+q}, v{R+q}, v{R+6+q}")
        a(f"v_add_f32 v{R+q}, v{R+q}, v{R+12+q}")
        a(f"v_add_f32 v{R+q}, v{R+q}, v{R+18+q}")
    P4 = T + 24
    a(f"v_cvt_pk_bf16_f32 v{P4}, v{R}, v{R+1}")
    a(f"v_cvt_pk_bf16_f32 v{P4+1}, v{R+2}, v{R+3}")
    a(f"v_cvt_pk_bf16_f32 v{P4+2}, v{R+4}, v{R+5}")
    a(f"v_mov_b32 v{P4+3}, s70")
    a("s_nop 0")
    store_scoped(f"buffer_store_dwordx4 v[{P4}:{P4+3}], v13, s[8:11], s69 offen")
    a("s_mov_b64 exec, s[62:63]")
    a(f"s_mul_i32 s58, s66, {8*12288}")
    a(f"s_add_u32 s58, s58, {KM}")
    a(f"buffer_store_dwordx3 v[{P4}:{P4+2}], v15, s[8:11], s58 offen")
    a("s_mov_b64 exec, -1")
    GR = T
    a("s_mov_b32 s59, 0")
    gp = a.newlabel("gpoll"); gok = a.newlabel("gok")
    a.label(gp)
    a(f"v_mov_b32 v{GR+7}, s70")
    a(f"buffer_load_dwordx4 v[{GR}:{GR+3}], v16, s[8:11], s68 offen sc1")
    a("s_mov_b64 exec, s[78:79]")
    a(f"buffer_load_dwordx4 v[{GR+4}:{GR+7}], v17, s[8:11], s68 offen sc1")
    a("s_mov_b64 exec, -1")
    a("s_waitcnt vmcnt(0)")
    a(f"v_cmp_ne_u32 vcc, s70, v{GR+3}")
    a(f"v_cmp_ne_u32 s[64:65], s70, v{GR+7}")
    a("s_or_b64 vcc, vcc, s[64:65]")
    a(f"s_cbranch_vccz {gok}")
    a("s_sleep 1")
    a("s_add_u32 s59, s59, 1")
    a(f"s_cmp_lt_u32 s59, {POLL_CAP}")
    a(f"s_cbranch_scc1 {gp}")
    a(f"s_branch {bail}")
    a.label(gok)
    stamp(4)
    a("s_and_b32 s58, s66, 1")
    for i in range(2):
        if i == 1:
            a("s_mov_b64 exec, s[78:79]")
        a(f"v_mul_u32_u24 v3, s58, v{20+i}")
        a(f"v_add_u32 v3, v3, v{18+i}")
        a(f"ds_write2_b32 v3, v{GR+4*i}, v{GR+4*i+1} offset0:0 offset1:1")
        a(f"ds_write_b32 v3, v{GR+4*i+2} offset:8")
    a("s_mov_b64 exec, -1")
    a("s_waitcnt lgkmcnt(0)")
    a("s_barrier")
    stamp(5)
    SA = T
    FB = T + 12
    askip = a.newlabel("askip")
    a("s_cmp_ge_u32 s46, 4")
    a(f"s_cbranch_scc1 {askip}")
    a(f"s_mul_i32 s59, s58, {KBUF}")
    a("v_add_u32 v6, s59, v23")
    for i in range(12):
        a(f"v_mov_b32 v{SA+i}, 0")
    def rd(ks):
        b = FB + (ks % 2)*16
        a(f"ds_read_b128 v[{b}:{b+3}], v22 offset:{64*ks}")
        a(f"ds_read_b128 v[{b+4}:{b+7}], v6 offset:{64*ks}")
        a(f"ds_read_b128 v[{b+8}:{b+11}], v6 offset:{16*QRS + 64*ks}")
        a(f"ds_read_b128 v[{b+12}:{b+15}], v22 offset:{3200 + 64*ks}")
    rd(0)
    for ks in range(6):
        if ks < 5:
            rd(ks+1)
            a("s_waitcnt lgkmcnt(4)")
        else:
            a("s_waitcnt lgkmcnt(0)")
        b = FB + (ks % 2)*16
        for kt in range(3):
            a(f"v_mfma_f32_16x16x32_bf16 v[{SA+4*kt}:{SA+4*kt+3}], v[{b+4+4*kt}:{b+7+4*kt}], v[{b}:{b+3}], v[{SA+4*kt}:{SA+4*kt+3}]")
    VF = T + 12
    PF = T + 36
    OA = ST
    a(f"s_mul_i32 s59, s58, {VBUF}")
    a("s_add_u32 s59, s59, s84")
    a("v_add_u32 v6, s59, v24")
    a("s_nop 4")
    for dt in range(3):
        b = VF + 8*dt
        for kt in range(3):
            a(f"ds_read_b64_tr_b16 v[{b+2*kt}:{b+2*kt+1}], v6 offset:{kt*16*VRS + dt*32}")
        a(f"v_mov_b32 v{b+6}, 0")
        a(f"v_mov_b32 v{b+7}, 0")
    for i in range(12):
        a(f"v_mov_b32 v{OA+i}, 0")
    regs = [SA + i for i in range(12)]
    round_scale(a, regs, 3, 50)
    a(f"v_mov_b32 v4, {NEGBIG}")
    a("v_cmp_gt_u32 vcc, 2, v9")
    a("s_nop 1")
    for r in range(4):
        a(f"v_cndmask_b32 v{SA+8+r}, v4, v{SA+8+r}, vcc")
    softmax_rows(a, regs, 4, 5, 3, 51)
    for i in range(6):
        a(f"v_cvt_pk_bf16_f32 v{PF+i}, v{regs[2*i]}, v{regs[2*i+1]}")
    a(f"v_mov_b32 v{PF+6}, 0")
    a(f"v_mov_b32 v{PF+7}, 0")
    a("s_waitcnt lgkmcnt(0)")
    a("s_nop 1")
    for dt in range(3):
        b = VF + dt*8
        a(f"v_mfma_f32_16x16x32_bf16 v[{OA+4*dt}:{OA+4*dt+3}], v[{b}:{b+3}], v[{PF}:{PF+3}], v[{OA+4*dt}:{OA+4*dt+3}]")
        a(f"v_mfma_f32_16x16x32_bf16 v[{OA+4*dt}:{OA+4*dt+3}], v[{b+4}:{b+7}], v[{PF+4}:{PF+7}], v[{OA+4*dt}:{OA+4*dt+3}]")
    a("v_add_u32 v6, s84, v25")
    a("s_nop 7")
    a("s_mov_b64 exec, s[52:53]")
    for dt in range(3):
        a(f"v_cvt_pk_bf16_f32 v4, v{OA+4*dt}, v{OA+4*dt+1}")
        a(f"v_cvt_pk_bf16_f32 v5, v{OA+4*dt+2}, v{OA+4*dt+3}")
        a(f"ds_write_b64 v6, v[4:5] offset:{32*dt}")
        a("s_nop 0")
    a("s_mov_b64 exec, -1")
    a.label(askip)
    a("s_cmp_ge_u32 s66, %d" % (int(os.environ.get("NSTEPS", "64")) - 1))
    a(f"s_cbranch_scc1 {done}")
    a("s_add_u32 s71, s66, 1")
    a("s_waitcnt lgkmcnt(0)")
    prefetch(71)
    a("s_barrier")
    stamp(6)
    OF = T; WA = T + 24
    for ks in range(6):
        a(f"ds_read_b128 v[{OF+4*ks}:{OF+4*ks+3}], v26 offset:{64*ks}")
    for i in range(8):
        a(f"v_mov_b32 v{WA+i}, 0")
    for ks in range(6):
        a(f"s_waitcnt lgkmcnt({5-ks})")
        a(f"v_mfma_f32_16x16x32_bf16 v[{WA}:{WA+3}], a[{100+4*ks}:{103+4*ks}], v[{OF+4*ks}:{OF+4*ks+3}], v[{WA}:{WA+3}]")
        a(f"v_mfma_f32_16x16x32_bf16 v[{WA+4}:{WA+7}], a[{124+4*ks}:{127+4*ks}], v[{OF+4*ks}:{OF+4*ks+3}], v[{WA+4}:{WA+7}]")
    a("s_lshr_b32 s86, s66, 1")
    a("s_add_u32 s86, s86, 1")
    a("s_and_b32 s86, s86, 1")
    a("s_and_b32 s87, s66, 1")
    a(f"s_mul_i32 s87, s87, {128*5120}")
    a(f"s_add_u32 s87, s87, {PB2}")
    a("s_mul_i32 s58, s73, 5120")
    a("s_add_u32 s58, s58, s87")
    a("s_nop 3")
    for i in range(8):
        a(f"v_and_b32 v{WA+i}, -2, v{WA+i}")
        a(f"v_or_b32 v{WA+i}, s86, v{WA+i}")
    a("s_mov_b64 exec, s[52:53]")
    store_scoped(f"buffer_store_dwordx4 v[{WA}:{WA+3}], v27, s[8:11], s58 offen")
    sk = a.newlabel("skt")
    a("s_cmp_ge_u32 s46, 2")
    a(f"s_cbranch_scc1 {sk}")
    store_scoped(f"buffer_store_dwordx4 v[{WA+4}:{WA+7}], v28, s[8:11], s58 offen")
    a.label(sk)
    a("s_mov_b64 exec, -1")
    stamp(7)
    CG = T
    fskip = a.newlabel("fskip")
    a("s_cmp_ge_u32 s46, 2")
    a(f"s_cbranch_scc1 {fskip}")
    a("s_mov_b64 exec, s[82:83]")
    def tagpoll(n, voff, sbase, stride, lab):
        p = a.newlabel(lab + "p"); ok = a.newlabel(lab + "ok")
        a("s_mov_b32 s59, 0")
        a.label(p)
        a(f"s_mov_b32 s58, s{sbase}")
        for k in range(n):
            a(f"buffer_load_dwordx4 v[{CG+4*k}:{CG+4*k+3}], v{voff}, s[8:11], s58 offen sc1")
            if k < n-1:
                a(f"s_add_u32 s58, s58, {stride}")
        a("s_waitcnt vmcnt(0)")
        a(f"v_and_b32 v3, v{CG}, v{CG+1}")
        a(f"v_or_b32 v4, v{CG}, v{CG+1}")
        for k in range(2, 4*n):
            a(f"v_and_b32 v3, v3, v{CG+k}")
            a(f"v_or_b32 v4, v4, v{CG+k}")
        a("v_not_b32 v4, v4")
        a("s_cmp_eq_u32 s86, 1")
        a("s_cselect_b64 vcc, -1, 0")
        a("v_cndmask_b32 v3, v4, v3, vcc")
        a("v_and_b32 v3, 1, v3")
        a("v_cmp_ne_u32 vcc, 1, v3")
        a(f"s_cbranch_vccz {ok}")
        a("s_add_u32 s59, s59, 1")
        a(f"s_cmp_lt_u32 s59, {POLL_CAP}")
        a(f"s_cbranch_scc1 {p}")
        a("s_mov_b64 exec, -1")
        a(f"s_branch {bail}")
        a.label(ok)
        for k in range(1, n):
            for c in range(4):
                a(f"v_add_f32 v{CG+c}, v{CG+c}, v{CG+4*k+c}")
    tagpoll(4, 29, 87, 4*5120, "r1")
    stamp(8)
    for c in range(4):
        a(f"v_and_b32 v{CG+c}, -2, v{CG+c}")
        a(f"v_or_b32 v{CG+c}, s86, v{CG+c}")
    a("s_and_b32 s89, s66, 1")
    a(f"s_mul_i32 s89, s89, {128*1280}")
    a(f"s_add_u32 s89, s89, {CB2}")
    a("s_mul_i32 s58, s73, 1280")
    a("s_add_u32 s58, s58, s89")
    a(f"buffer_store_dwordx4 v[{CG}:{CG+3}], v13, s[8:11], s58 offen sc1")
    a("s_nop 1")
    tagpoll(8, 30, 89, 16*1280, "cc")
    stamp(9)
    a(f"v_cvt_pk_bf16_f32 v{CG+4}, v{CG}, v{CG+1}")
    a(f"v_cvt_pk_bf16_f32 v{CG+5}, v{CG+2}, v{CG+3}")
    a(f"v_mov_b32 v{CG+6}, s71")
    a(f"v_mov_b32 v{CG+7}, 0")
    a("s_and_b32 s58, s66, 1")
    a(f"s_mul_i32 s58, s58, {128*1280}")
    a(f"s_add_u32 s58, s58, {LB2}")
    a("s_mul_i32 s59, s73, 1280")
    a("s_add_u32 s58, s58, s59")
    store_scoped(f"buffer_store_dwordx4 v[{CG+4}:{CG+7}], v13, s[8:11], s58 offen")
    a("s_mov_b64 exec, -1")
    a.label(fskip)
    a("s_waitcnt vmcnt(1)")
    a("s_xor_b32 s67, s67, 1")
    pwrite(67)
    stamp(10)
    stamp_flush()
    a("s_mov_b32 s66, s71")
    a(f"s_branch {loop}")
    a.label(bail)
    a.label(done)
    a("s_endpgm")
    kernel_end(a, name, 108 + 148, 96, accum=108)
    return 256, L_END
```
